```python
import torch

def _softmax(x, axis=-1):
    return torch.softmax(x, dim=axis)
def _gelu(x):
    return torch.nn.functional.gelu(x, approximate="tanh")
def _silu(x):
    return torch.nn.functional.silu(x)
def _sigmoid(x):
    return torch.sigmoid(x)
def _layernorm(x, axis=-1, eps=1e-5):
    m = x.mean(dim=axis, keepdim=True)
    v = x.var(dim=axis, keepdim=True, unbiased=False)
    return (x - m) / torch.sqrt(v + eps)
def _scatter_add(tgt, idx, src, axis=0):
    return tgt.clone().index_add_(axis, idx, src)
def _segment_sum(src, seg, n):
    out = torch.zeros((n,) + src.shape[1:], dtype=src.dtype)
    return out.index_add_(0, seg, src)
def _pad(x, pw):
    flat = tuple(v for pair in reversed(pw) for v in pair)
    return torch.nn.functional.pad(x, flat)

kernel_name = 'standalone__low_rank_proj_linformer__sampling'

def setup_inputs():

    _w = (lambda a: (lambda t: t.to(torch.bfloat16) if t.is_floating_point() else t)(torch.as_tensor(a)))
    B, H, Sq, Skv, Dh, R = 8, 32, 16, 4096, 192, 8
    return {
        "q": _w((lambda *s: torch.randn(*s, dtype=torch.bfloat16) * 0.8)(B, H, Sq, Dh)),
        "k": _w((lambda *s: torch.randn(*s, dtype=torch.bfloat16) * 0.8)(B, H, Skv, Dh)),
        "v": _w((lambda *s: torch.randn(*s, dtype=torch.bfloat16) * 0.05)(B, H, Skv, Dh)),
        "e_proj": _w((lambda *s: torch.randn(*s, dtype=torch.bfloat16) * 0.8)(R, Skv) * (Skv ** -0.5)),
        "f_proj": _w((lambda *s: torch.randn(*s, dtype=torch.bfloat16) * 0.05)(R, Skv) * (Skv ** -0.5)),
    }

def reference(q, k, v, e_proj, f_proj):
    B, H, Sq, Dh = q.shape
    kp = torch.einsum("rn,bhnd->bhrd", e_proj, k)
    vp = torch.einsum("rn,bhnd->bhrd", f_proj, v)
    scores = torch.einsum("bhqd,bhrd->bhqr", q, kp) * (Dh ** -0.5)
    p = _softmax(scores, axis=-1)
    o = torch.einsum("bhqr,bhrd->bhqd", p, vp)
    return o
```

```python
import sys

KNAME = "standalone__low_rank_proj_linformer__sampling_kernel"

HEADER = """; Kernarg layout for this problem (64 bytes, ptrs only, base s[0:1]):
"""


def gen(nt=True, NW=8):
    o = []
    w = o.append
    NT = " nt" if nt else ""
    HEADB = 4096 * 384
    BLKB = 64 * 384
    NBLK = 64
    PERW = NBLK // NW
    TOT = 2 * PERW
    JS = 26 * 16
    RS = 8 * JS
    PS = 2 * RS
    NPART = 2 * NW
    KPB = NPART * PS
    KPROW = 400
    LDS = KPB + 8 * KPROW
    LDS = (LDS + 255) // 256 * 256

    vS = [1, 2, 3]
    vA = 4
    vWP, vWQ, vRD = 5, 6, 7
    vT0, vT1, vT2, vT3 = 8, 9, 10, 11
    ARAW, ALO, AHI = 12, 16, 20
    T = 24
    QF = 56
    PB1, PB2 = 80, 82
    ACC = 84
    RING = 148
    NV = RING + 96

    def accP(j): return ACC + 4 * j
    def accQ(j): return ACC + 32 + 4 * j
    def vr(b, n=4): return f"v[{b}:{b+n-1}]"

    SN = 16
    SA = 20
    SQ = 24
    SO = 28
    sKb, sVb = 32, 34
    sW = 36
    sT = 37
    sOffN = 38
    sOffA = 39
    sSelLo, sSelHi = 40, 41
    sMLo, sMHi = 42, 44
    sTmp = 46
    sTmp2 = 47
    sExQ = 48
    sG01, sG23 = 50, 52
    sC0, sC1 = 54, 55

    w(HEADER.rstrip("\n"))
    w(f"; @launch grid=(256,1,1) block=({NW*64},1,1) lds={LDS}")
    w('.amdgcn_target "amdgcn-amd-amdhsa--gfx950"')
    w(".text")
    w(f".globl {KNAME}")
    w(".p2align 8")
    w(f".type {KNAME},@function")
    w(f"{KNAME}:")
    w("  s_cmp_ge_u32 s2, 256")
    w("  s_cbranch_scc1 L_end")
    w("  s_load_dwordx8 s[4:11], s[0:1], 0")
    w("  s_load_dwordx4 s[12:15], s[0:1], 32")
    w("  v_and_b32 v8, 63, v0")
    w("  v_lshrrev_b32 v9, 6, v0")
    w("  v_lshrrev_b32 v10, 4, v8")
    w("  v_and_b32 v11, 15, v8")
    w(f"  v_readfirstlane_b32 s{sW}, v9")
    w("  v_mul_u32_u24 v12, 3072, v10")
    w("  v_lshlrev_b32 v13, 4, v11")
    w(f"  v_add_u32 v{vS[0]}, v12, v13")
    w(f"  v_add_u32 v{vS[2]}, {12288+128}, v{vS[0]}")
    w("  v_and_b32 v14, 7, v11")
    w("  v_lshrrev_b32 v15, 3, v11")
    w("  v_lshlrev_b32 v16, 4, v14")
    w("  v_add_u32 v16, v12, v16")
    w(f"  v_mul_u32_u24 v17, {12288-256}, v15")
    w("  v_add_u32 v16, v16, v17")
    w(f"  v_add_u32 v{vS[1]}, 256, v16")
    w("  v_lshlrev_b32 v16, 13, v14")
    w("  v_lshlrev_b32 v17, 6, v15")
    w("  v_lshlrev_b32 v18, 4, v10")
    w(f"  v_add3_u32 v{vA}, v16, v17, v18")
    w("  v_mul_u32_u24 v19, 384, v11")
    w("  v_add_u32 v19, v19, v18")
    w("  v_lshrrev_b32 v20, 1, v10")
    w("  v_and_b32 v21, 1, v10")
    w("  v_lshlrev_b32 v22, 1, v9")
    w("  v_add_u32 v22, v22, v20")
    w(f"  v_mul_u32_u24 v22, {PS}, v22")
    w(f"  v_mul_u32_u24 v23, {RS}, v21")
    w("  v_add_u32 v22, v22, v23")
    w("  v_lshlrev_b32 v23, 7, v20")
    w(f"  v_add3_u32 v{vWP}, v22, v23, v13")
    w("  v_mul_u32_u24 v23, 384, v20")
    w("  v_add_u32 v24, v22, v13")
    w("  v_add_u32 v24, 256, v24")
    w(f"  v_sub_u32 v{vWQ}, v24, v23")
    w("  v_lshlrev_b32 v22, 1, v9")
    w("  v_add_u32 v22, v22, v20")
    w("  v_lshlrev_b32 v23, 1, v22")
    w("  v_add_u32 v23, v23, v15")
    w("  v_lshlrev_b32 v23, 4, v23")
    w(f"  v_mul_u32_u24 v24, {JS}, v14")
    w(f"  v_mul_u32_u24 v25, {RS}, v21")
    w(f"  v_add3_u32 v{vRD}, v23, v24, v25")
    w("  v_lshlrev_b32 v23, 4, v22")
    w("  v_add_u32 v23, v23, v11")
    w("  v_lshlrev_b32 v23, 1, v23")
    w(f"  v_mul_u32_u24 v24, {4*KPROW}, v21")
    w(f"  v_add_u32 v24, {KPB}, v24")
    w("  v_add_u32 v26, v23, v24")
    w(f"  v_mul_u32_u24 v24, {KPROW}, v14")
    w(f"  v_add_u32 v24, {KPB}, v24")
    w("  v_add_u32 v27, v24, v18")
    w("  v_mul_u32_u24 v24, 384, v11")
    w("  v_lshlrev_b32 v25, 6, v9")
    w("  v_lshlrev_b32 v28, 3, v10")
    w("  v_add3_u32 v28, v24, v25, v28")
    w(f"  v_mov_b32 v{vT0}, v26")
    w(f"  v_mov_b32 v{vT1}, v27")
    w(f"  v_mov_b32 v{vT2}, v28")
    w(f"  s_mov_b32 s{sSelLo}, 0x05040100")
    w(f"  s_mov_b32 s{sSelHi}, 0x07060302")
    w(f"  s_mov_b32 s{sMLo}, 0x00ff00ff")
    w(f"  s_mov_b32 s{sMLo+1}, 0x00ff00ff")
    w(f"  s_mov_b32 s{sMHi}, 0xff00ff00")
    w(f"  s_mov_b32 s{sMHi+1}, 0xff00ff00")
    w(f"  s_mov_b32 s{sExQ}, 0x00ff00ff")
    w(f"  s_mov_b32 s{sExQ+1}, 0xff00ff00")
    w(f"  s_mov_b32 s{sG01}, -1")
    w(f"  s_mov_b32 s{sG01+1}, 0")
    w(f"  s_mov_b32 s{sG23}, 0")
    w(f"  s_mov_b32 s{sG23+1}, -1")
    w(f"  s_mul_i32 s{sTmp}, s2, {HEADB}")
    w(f"  s_mul_i32 s{sTmp2}, s2, 6144")
    w("  s_waitcnt lgkmcnt(0)")
    w(f"  s_add_u32 s{sKb}, s6, s{sTmp}")
    w(f"  s_addc_u32 s{sKb+1}, s7, 0")
    w(f"  s_add_u32 s{sVb}, s8, s{sTmp}")
    w(f"  s_addc_u32 s{sVb+1}, s9, 0")
    w(f"  s_and_b32 s{sKb+1}, s{sKb+1}, 0xffff")
    w(f"  s_and_b32 s{sVb+1}, s{sVb+1}, 0xffff")
    w(f"  s_and_b32 s11, s11, 0xffff")
    w(f"  s_and_b32 s13, s13, 0xffff")
    w(f"  s_mov_b32 s{SN}, s{sKb}")
    w(f"  s_mov_b32 s{SN+1}, s{sKb+1}")
    w(f"  s_mov_b32 s{SN+2}, {HEADB}")
    w(f"  s_mov_b32 s{SN+3}, 0x00020000")
    w(f"  s_mov_b32 s{SA}, s10")
    w(f"  s_mov_b32 s{SA+1}, s11")
    w(f"  s_mov_b32 s{SA+2}, 65536")
    w(f"  s_mov_b32 s{SA+3}, 0x00020000")
    w(f"  s_add_u32 s{SQ}, s4, s{sTmp2}")
    w(f"  s_addc_u32 s{SQ+1}, s5, 0")
    w(f"  s_and_b32 s{SQ+1}, s{SQ+1}, 0xffff")
    w(f"  s_mov_b32 s{SQ+2}, 6144")
    w(f"  s_mov_b32 s{SQ+3}, 0x00020000")
    w(f"  s_add_u32 s{SO}, s14, s{sTmp2}")
    w(f"  s_addc_u32 s{SO+1}, s15, 0")
    w(f"  s_and_b32 s{SO+1}, s{SO+1}, 0xffff")
    w(f"  s_mov_b32 s{SO+2}, 6144")
    w(f"  s_mov_b32 s{SO+3}, 0x00020000")
    w(f"  s_mul_i32 s{sOffN}, s{sW}, {BLKB}")
    w(f"  s_lshl_b32 s{sOffA}, s{sW}, 7")
    w(f"  s_mov_b32 s{sT}, 0")

    def loads(unit_set, ring_slot, rows=range(8)):
        for i in rows:
            w(f"  buffer_load_dwordx4 {vr(RING + 32*ring_slot + 4*i)}, v{vS[unit_set]}, s[{SN}:{SN+3}], s{sOffN} offen offset:{i*384}{NT}")

    def loadA():
        w(f"  buffer_load_dwordx4 {vr(ARAW)}, v{vA}, s[{SA}:{SA+3}], s{sOffA} offen")

    UNITS = [(1, ARAW, accQ), (0, ALO, accP), (2, AHI, accP)]

    for t in range(6):
        w(f"  buffer_load_dwordx4 {vr(QF+4*t)}, v19, s[{SQ}:{SQ+3}], 0 offen offset:{t*64}")
    loads(UNITS[0][0], 0)
    loadA()
    loads(UNITS[1][0], 1)
    loads(UNITS[2][0], 2)
    for r in range(64):
        w(f"  v_mov_b32 v{ACC+r}, 0")

    w("L_loop:")
    w(f"  s_add_u32 s{sTmp}, s{sT}, 1")
    w(f"  s_cmp_ge_u32 s{sTmp}, {PERW}")
    w(f"  s_cselect_b32 s{SN}, s{sVb}, s{sKb}")
    w(f"  s_cselect_b32 s{SN+1}, s{sVb+1}, s{sKb+1}")
    w(f"  s_cselect_b32 s{SA}, s12, s10")
    w(f"  s_cselect_b32 s{SA+1}, s13, s11")
    w(f"  s_cmp_ge_u32 s{sTmp}, {TOT}")
    w(f"  s_cselect_b32 s{SN+2}, 0, {HEADB}")
    w(f"  s_cselect_b32 s{SA+2}, 0, 65536")
    w(f"  s_and_b32 s{sTmp}, s{sTmp}, {PERW-1}")
    w(f"  s_mul_i32 s{sTmp}, s{sTmp}, {NW}")
    w(f"  s_add_u32 s{sTmp}, s{sTmp}, s{sW}")
    w(f"  s_mul_i32 s{sOffN}, s{sTmp}, {BLKB}")
    w(f"  s_lshl_b32 s{sOffA}, s{sTmp}, 7")
    for u, (st, areg, accf) in enumerate(UNITS):
        n_out = 16 if u == 0 else 17
        w(f"  s_waitcnt vmcnt({n_out})")
        if u == 0:
            for e in range(4):
                w(f"  v_cndmask_b32 v{ALO+e}, 0, v{ARAW+e}, s[{sMLo}:{sMLo+1}]")
                w(f"  v_cndmask_b32 v{AHI+e}, 0, v{ARAW+e}, s[{sMHi}:{sMHi+1}]")
        R = RING + 32 * u
        for m in range(4):
            for dw in range(4):
                x = R + 4 * (2 * m) + dw
                y = R + 4 * (2 * m + 1) + dw
                w(f"  v_perm_b32 v{T + 4*(2*dw) + m}, v{y}, v{x}, s{sSelLo}")
                w(f"  v_perm_b32 v{T + 4*(2*dw+1) + m}, v{y}, v{x}, s{sSelHi}")
            loads(st, u, rows=(2 * m, 2 * m + 1))
        for j in range(8):
            w(f"  v_mfma_f32_16x16x32_bf16 {vr(accf(j))}, {vr(areg)}, {vr(T+4*j)}, {vr(accf(j))}")
        if u == 0:
            loadA()
    w(f"  s_add_u32 s{sT}, s{sT}, 1")
    w(f"  s_cmp_eq_u32 s{sT}, {PERW}")
    w("  s_cbranch_scc1 L_dumpK")
    w(f"  s_cmp_eq_u32 s{sT}, {PERW+1}")
    w("  s_cbranch_scc1 L_redK")
    w(f"  s_cmp_eq_u32 s{sT}, {PERW+2}")
    w("  s_cbranch_scc1 L_soft")
    w(f"  s_cmp_lt_u32 s{sT}, {TOT}")
    w("  s_cbranch_scc1 L_loop")
    w("  s_branch L_tail")

    def dump():
        w("  s_nop 7")
        w("  s_nop 1")
        for j in range(8):
            w(f"  ds_write_b128 v{vWP}, {vr(accP(j))} offset:{j*JS}")
        w(f"  s_mov_b64 exec, s[{sExQ}:{sExQ+1}]")
        for j in range(8):
            w(f"  ds_write_b128 v{vWQ}, {vr(accQ(j))} offset:{j*JS}")
        w("  s_mov_b64 exec, -1")

    def reduce_partials(dst):
        nb = NPART // 8
        for b in range(nb):
            for p in range(8):
                pp = b * 8 + p
                off = pp * PS
                if off <= 65535 - 0:
                    w(f"  ds_read_b128 {vr(T+4*p)}, v{vRD} offset:{off}")
                else:
                    w(f"  ds_read_b128 {vr(T+4*p)}, v{vRD2} offset:{off-HALF}")
            for p in range(8):
                w(f"  s_waitcnt lgkmcnt({7-p})")
                for e in range(4):
                    if b == 0 and p == 0:
                        w(f"  v_mov_b32 v{dst+e}, v{T+4*p+e}")
                    else:
                        w(f"  v_add_f32 v{dst+e}, v{dst+e}, v{T+4*p+e}")

    HALF = 8 * PS
    vRD2 = ARAW

    w("L_dumpK:")
    dump()
    for r in range(64):
        w(f"  v_mov_b32 v{ACC+r}, 0")
    w("  s_branch L_loop")

    w("L_redK:")
    w("  s_waitcnt lgkmcnt(0)")
    w("  s_barrier")
    w(f"  s_cmp_ge_u32 s{sW}, 6")
    w("  s_cbranch_scc1 L_loop")
    vRD2 = T + 31 + 0
    vRD2 = vT3
    w(f"  v_add_u32 v{vRD2}, {HALF}, v{vRD}")
    reduce_partials(PB1)
    w(f"  v_cvt_pk_bf16_f32 v{T}, v{PB1}, v{PB1+1}")
    w(f"  v_cvt_pk_bf16_f32 v{T+1}, v{PB1+2}, v{PB1+3}")
    w(f"  ds_write_b16 v{vT0}, v{T} offset:0")
    w(f"  ds_write_b16_d16_hi v{vT0}, v{T} offset:{KPROW}")
    w(f"  ds_write_b16 v{vT0}, v{T+1} offset:{2*KPROW}")
    w(f"  ds_write_b16_d16_hi v{vT0}, v{T+1} offset:{3*KPROW}")
    w("  s_branch L_loop")

    w("L_soft:")
    w("  s_waitcnt lgkmcnt(0)")
    w("  s_barrier")
    S = T + 24
    for e in range(4):
        w(f"  v_mov_b32 v{S+e}, 0")
    for t in range(6):
        w(f"  ds_read_b128 {vr(T+4*t)}, v{vT1} offset:{t*64}")
    for t in range(6):
        w(f"  s_waitcnt lgkmcnt({5-t})")
        w(f"  v_mfma_f32_16x16x32_bf16 {vr(S)}, {vr(T+4*t)}, {vr(QF+4*t)}, {vr(S)}")
    w("  s_nop 7")
    w("  s_nop 1")
    w(f"  s_mov_b32 s{sC0}, 0x3d93cd3a")
    w(f"  s_mov_b32 s{sC1}, 0x3fb8aa3b")
    X = T
    w(f"  v_cvt_pk_bf16_f32 v{X}, v{S}, v{S+1}")
    w(f"  v_cvt_pk_bf16_f32 v{X+1}, v{S+2}, v{S+3}")
    w(f"  v_lshlrev_b32 v{S}, 16, v{X}")
    w(f"  v_and_b32 v{S+1}, 0xffff0000, v{X}")
    w(f"  v_lshlrev_b32 v{S+2}, 16, v{X+1}")
    w(f"  v_and_b32 v{S+3}, 0xffff0000, v{X+1}")
    for e in range(4):
        w(f"  v_mul_f32 v{S+e}, s{sC0}, v{S+e}")
    w(f"  v_cvt_pk_bf16_f32 v{X}, v{S}, v{S+1}")
    w(f"  v_cvt_pk_bf16_f32 v{X+1}, v{S+2}, v{S+3}")
    w(f"  v_lshlrev_b32 v{S}, 16, v{X}")
    w(f"  v_and_b32 v{S+1}, 0xffff0000, v{X}")
    w(f"  v_lshlrev_b32 v{S+2}, 16, v{X+1}")
    w(f"  v_and_b32 v{S+3}, 0xffff0000, v{X+1}")
    w(f"  v_max_f32 v{X}, v{S}, v{S+1}")
    w(f"  v_max3_f32 v{X}, v{X}, v{S+2}, v{S+3}")
    w(f"  ds_swizzle_b32 v{X+1}, v{X} offset:0x401F")
    w("  s_waitcnt lgkmcnt(0)")
    w(f"  v_max_f32 v{X}, v{X}, v{X+1}")
    for e in range(4):
        w(f"  v_sub_f32 v{S+e}, v{S+e}, v{X}")
    for e in range(4):
        w(f"  v_mul_f32 v{S+e}, s{sC1}, v{S+e}")
    for e in range(4):
        w(f"  v_exp_f32 v{S+e}, v{S+e}")
    w("  s_nop 0")
    w(f"  v_add_f32 v{X}, v{S}, v{S+1}")
    w(f"  v_add_f32 v{X+1}, v{S+2}, v{S+3}")
    w(f"  v_add_f32 v{X}, v{X}, v{X+1}")
    w(f"  ds_swizzle_b32 v{X+1}, v{X} offset:0x401F")
    w("  s_waitcnt lgkmcnt(0)")
    w(f"  v_add_f32 v{X}, v{X}, v{X+1}")
    w(f"  v_rcp_f32 v{X}, v{X}")
    w("  s_nop 0")
    for e in range(4):
        w(f"  v_mul_f32 v{S+e}, v{S+e}, v{X}")
    w(f"  v_cvt_pk_bf16_f32 v{X}, v{S}, v{S+1}")
    w(f"  v_cvt_pk_bf16_f32 v{X+1}, v{S+2}, v{S+3}")
    w(f"  v_cndmask_b32 v{PB1}, 0, v{X}, s[{sG01}:{sG01+1}]")
    w(f"  v_cndmask_b32 v{PB1+1}, 0, v{X+1}, s[{sG01}:{sG01+1}]")
    w(f"  v_cndmask_b32 v{PB2}, 0, v{X}, s[{sG23}:{sG23+1}]")
    w(f"  v_cndmask_b32 v{PB2+1}, 0, v{X+1}, s[{sG23}:{sG23+1}]")
    w("  s_branch L_loop")

    w("L_tail:")
    dump()
    w("  s_waitcnt lgkmcnt(0)")
    w("  s_barrier")
    w(f"  s_cmp_ge_u32 s{sW}, 6")
    w("  s_cbranch_scc1 L_end")
    w(f"  v_add_u32 v{vRD2}, {HALF}, v{vRD}")
    D = ACC
    reduce_partials(D)
    w(f"  v_cvt_pk_bf16_f32 v{D+4}, v{D}, v{D+1}")
    w(f"  v_cvt_pk_bf16_f32 v{D+5}, v{D+2}, v{D+3}")
    w("  s_nop 1")
    w(f"  v_mfma_f32_16x16x16_bf16 {vr(D+8)}, {vr(D+4,2)}, {vr(PB1,2)}, 0")
    w(f"  v_mfma_f32_16x16x16_bf16 {vr(D+12)}, {vr(D+4,2)}, {vr(PB2,2)}, 0")
    w("  s_nop 7")
    w("  s_nop 1")
    w(f"  v_cvt_pk_bf16_f32 v{D+16}, v{D+8}, v{D+9}")
    w(f"  v_cvt_pk_bf16_f32 v{D+17}, v{D+10}, v{D+11}")
    w(f"  v_cvt_pk_bf16_f32 v{D+18}, v{D+12}, v{D+13}")
    w(f"  v_cvt_pk_bf16_f32 v{D+19}, v{D+14}, v{D+15}")
    w(f"  buffer_store_dwordx2 {vr(D+16,2)}, v{vT2}, s[{SO}:{SO+3}], 0 offen")
    w(f"  buffer_store_dwordx2 {vr(D+18,2)}, v{vT2}, s[{SO}:{SO+3}], 0 offen offset:32")
    w("L_end:")
    w("  s_endpgm")
    w('.section .rodata,"a"')
    w(".p2align 6")
    w(f".amdhsa_kernel {KNAME}")
    w(f"  .amdhsa_next_free_vgpr {NV}")
    w("  .amdhsa_next_free_sgpr 64")
    w(f"  .amdhsa_accum_offset {(NV+3)//4*4}")
    w("  .amdhsa_group_segment_fixed_size 0")
    w("  .amdhsa_kernarg_size 64")
    w("  .amdhsa_user_sgpr_count 2")
    w("  .amdhsa_user_sgpr_kernarg_segment_ptr 1")
    w("  .amdhsa_system_sgpr_workgroup_id_x 1")
    w(".end_amdhsa_kernel")
    return "\n".join(o) + "\n"


if __name__ == "__main__":
    out = sys.argv[1] if len(sys.argv) > 1 else "standalone__low_rank_proj_linformer__sampling.s"
    open(out, "w").write(gen())
```

```python
import sys

KNAME = "standalone__low_rank_proj_linformer__sampling_kernel"

HEADER = """; Kernarg layout for this problem (64 bytes, ptrs only, base s[0:1]):
"""


def gen(nt=True, NW=8, stamps=False):
    o = []
    w = o.append
    NT = " nt" if nt else ""
    def stamp(i):
        if stamps:
            w(f"  s_memrealtime s[{64+2*i}:{65+2*i}]")
    HEADB = 4096 * 384
    BLKB = 64 * 384
    NBLK = 64
    PERW = NBLK // NW
    TOT = 2 * PERW
    JS = 26 * 16
    RS = 8 * JS
    PS = 2 * RS
    NPART = 2 * NW
    KPB = NPART * PS
    KPROW = 400
    LDS = KPB + 8 * KPROW
    LDS = (LDS + 255) // 256 * 256

    vS = [1, 2, 3]
    vA = 4
    vWP, vWQ, vRD = 5, 6, 7
    vT0, vT1, vT2, vT3 = 8, 9, 10, 11
    ARAW, ALO, AHI = 12, 16, 20
    T = 24
    QF = 56
    PB1, PB2 = 80, 82
    ACC = 84
    RING = 148
    NV = RING + 96

    def accP(j): return ACC + 4 * j
    def accQ(j): return ACC + 32 + 4 * j
    def vr(b, n=4): return f"v[{b}:{b+n-1}]"

    SN = 16
    SA = 20
    SQ = 24
    SO = 28
    sKb, sVb = 32, 34
    sW = 36
    sT = 37
    sOffN = 38
    sOffA = 39
    sSelLo, sSelHi = 40, 41
    sMLo, sMHi = 42, 44
    sTmp = 46
    sTmp2 = 47
    sExQ = 48
    sG01, sG23 = 50, 52
    sC0, sC1 = 54, 55

    w(HEADER.rstrip("\n"))
    w(f"; @launch grid=(256,1,1) block=({NW*64},1,1) lds={LDS}")
    w('.amdgcn_target "amdgcn-amd-amdhsa--gfx950"')
    w(".text")
    w(f".globl {KNAME}")
    w(".p2align 8")
    w(f".type {KNAME},@function")
    w(f"{KNAME}:")
    w("  s_cmp_ge_u32 s2, 256")
    w("  s_cbranch_scc1 L_end")
    stamp(0)
    w("  s_load_dwordx8 s[4:11], s[0:1], 0")
    if stamps:
        w(f"  s_load_dwordx2 s[90:91], s[0:1], {56 if stamps == 1 else 48}")
    w("  s_load_dwordx4 s[12:15], s[0:1], 32")
    w("  v_and_b32 v8, 63, v0")
    w("  v_lshrrev_b32 v9, 6, v0")
    w("  v_lshrrev_b32 v10, 4, v8")
    w("  v_and_b32 v11, 15, v8")
    w(f"  v_readfirstlane_b32 s{sW}, v9")
    w("  v_mul_u32_u24 v12, 3072, v10")
    w("  v_lshlrev_b32 v13, 4, v11")
    w(f"  v_add_u32 v{vS[0]}, v12, v13")
    w(f"  v_add_u32 v{vS[2]}, {12288+128}, v{vS[0]}")
    w("  v_and_b32 v14, 7, v11")
    w("  v_lshrrev_b32 v15, 3, v11")
    w("  v_lshlrev_b32 v16, 4, v14")
    w("  v_add_u32 v16, v12, v16")
    w(f"  v_mul_u32_u24 v17, {12288-256}, v15")
    w("  v_add_u32 v16, v16, v17")
    w(f"  v_add_u32 v{vS[1]}, 256, v16")
    w("  v_lshlrev_b32 v16, 13, v14")
    w("  v_lshlrev_b32 v17, 6, v15")
    w("  v_lshlrev_b32 v18, 4, v10")
    w(f"  v_add3_u32 v{vA}, v16, v17, v18")
    w("  v_mul_u32_u24 v19, 384, v11")
    w("  v_add_u32 v19, v19, v18")
    w("  v_lshrrev_b32 v20, 1, v10")
    w("  v_and_b32 v21, 1, v10")
    w("  v_lshlrev_b32 v22, 1, v9")
    w("  v_add_u32 v22, v22, v20")
    w(f"  v_mul_u32_u24 v22, {PS}, v22")
    w(f"  v_mul_u32_u24 v23, {RS}, v21")
    w("  v_add_u32 v22, v22, v23")
    w("  v_lshlrev_b32 v23, 7, v20")
    w(f"  v_add3_u32 v{vWP}, v22, v23, v13")
    w("  v_mul_u32_u24 v23, 384, v20")
    w("  v_add_u32 v24, v22, v13")
    w("  v_add_u32 v24, 256, v24")
    w(f"  v_sub_u32 v{vWQ}, v24, v23")
    w("  v_lshlrev_b32 v22, 1, v9")
    w("  v_add_u32 v22, v22, v20")
    w("  v_lshlrev_b32 v23, 1, v22")
    w("  v_add_u32 v23, v23, v15")
    w("  v_lshlrev_b32 v23, 4, v23")
    w(f"  v_mul_u32_u24 v24, {JS}, v14")
    w(f"  v_mul_u32_u24 v25, {RS}, v21")
    w(f"  v_add3_u32 v{vRD}, v23, v24, v25")
    w("  v_lshlrev_b32 v23, 4, v22")
    w("  v_add_u32 v23, v23, v11")
    w("  v_lshlrev_b32 v23, 1, v23")
    w(f"  v_mul_u32_u24 v24, {4*KPROW}, v21")
    w(f"  v_add_u32 v24, {KPB}, v24")
    w("  v_add_u32 v26, v23, v24")
    w(f"  v_mul_u32_u24 v24, {KPROW}, v14")
    w(f"  v_add_u32 v24, {KPB}, v24")
    w("  v_add_u32 v27, v24, v18")
    w("  v_mul_u32_u24 v24, 384, v11")
    w("  v_lshlrev_b32 v25, 6, v9")
    w("  v_lshlrev_b32 v28, 3, v10")
    w("  v_add3_u32 v28, v24, v25, v28")
    w(f"  v_mov_b32 v{vT0}, v26")
    w(f"  v_mov_b32 v{vT1}, v27")
    w(f"  v_mov_b32 v{vT2}, v28")
    w(f"  s_mov_b32 s{sSelLo}, 0x05040100")
    w(f"  s_mov_b32 s{sSelHi}, 0x07060302")
    w(f"  s_mov_b32 s{sMLo}, 0x00ff00ff")
    w(f"  s_mov_b32 s{sMLo+1}, 0x00ff00ff")
    w(f"  s_mov_b32 s{sMHi}, 0xff00ff00")
    w(f"  s_mov_b32 s{sMHi+1}, 0xff00ff00")
    w(f"  s_mov_b32 s{sExQ}, 0x00ff00ff")
    w(f"  s_mov_b32 s{sExQ+1}, 0xff00ff00")
    w(f"  s_mov_b32 s{sG01}, -1")
    w(f"  s_mov_b32 s{sG01+1}, 0")
    w(f"  s_mov_b32 s{sG23}, 0")
    w(f"  s_mov_b32 s{sG23+1}, -1")
    w(f"  s_mul_i32 s{sTmp}, s2, {HEADB}")
    w(f"  s_mul_i32 s{sTmp2}, s2, 6144")
    w("  s_waitcnt lgkmcnt(0)")
    w(f"  s_add_u32 s{sKb}, s6, s{sTmp}")
    w(f"  s_addc_u32 s{sKb+1}, s7, 0")
    w(f"  s_add_u32 s{sVb}, s8, s{sTmp}")
    w(f"  s_addc_u32 s{sVb+1}, s9, 0")
    w(f"  s_and_b32 s{sKb+1}, s{sKb+1}, 0xffff")
    w(f"  s_and_b32 s{sVb+1}, s{sVb+1}, 0xffff")
    w(f"  s_and_b32 s11, s11, 0xffff")
    w(f"  s_and_b32 s13, s13, 0xffff")
    w(f"  s_mov_b32 s{SN}, s{sKb}")
    w(f"  s_mov_b32 s{SN+1}, s{sKb+1}")
    w(f"  s_mov_b32 s{SN+2}, {HEADB}")
    w(f"  s_mov_b32 s{SN+3}, 0x00020000")
    w(f"  s_mov_b32 s{SA}, s10")
    w(f"  s_mov_b32 s{SA+1}, s11")
    w(f"  s_mov_b32 s{SA+2}, 65536")
    w(f"  s_mov_b32 s{SA+3}, 0x00020000")
    w(f"  s_add_u32 s{SQ}, s4, s{sTmp2}")
    w(f"  s_addc_u32 s{SQ+1}, s5, 0")
    w(f"  s_and_b32 s{SQ+1}, s{SQ+1}, 0xffff")
    w(f"  s_mov_b32 s{SQ+2}, 6144")
    w(f"  s_mov_b32 s{SQ+3}, 0x00020000")
    w(f"  s_add_u32 s{SO}, s14, s{sTmp2}")
    w(f"  s_addc_u32 s{SO+1}, s15, 0")
    w(f"  s_and_b32 s{SO+1}, s{SO+1}, 0xffff")
    w(f"  s_mov_b32 s{SO+2}, 6144")
    w(f"  s_mov_b32 s{SO+3}, 0x00020000")
    w(f"  s_mul_i32 s{sOffN}, s{sW}, {BLKB}")
    w(f"  s_lshl_b32 s{sOffA}, s{sW}, 7")
    w(f"  s_mov_b32 s{sT}, 0")

    def loads(unit_set, ring_slot, rows=range(8)):
        for i in rows:
            w(f"  buffer_load_dwordx4 {vr(RING + 32*ring_slot + 4*i)}, v{vS[unit_set]}, s[{SN}:{SN+3}], s{sOffN} offen offset:{i*384}{NT}")

    def loadA():
        w(f"  buffer_load_dwordx4 {vr(ARAW)}, v{vA}, s[{SA}:{SA+3}], s{sOffA} offen")

    UNITS = [(1, ARAW, accQ), (0, ALO, accP), (2, AHI, accP)]

    for t in range(6):
        w(f"  buffer_load_dwordx4 {vr(QF+4*t)}, v19, s[{SQ}:{SQ+3}], 0 offen offset:{t*64}")
    loads(UNITS[0][0], 0)
    loadA()
    loads(UNITS[1][0], 1)
    loads(UNITS[2][0], 2)
    stamp(1)
    for r in range(64):
        w(f"  v_mov_b32 v{ACC+r}, 0")
    if stamps:
        w("  s_waitcnt vmcnt(24)")
        stamp(2)

    w("L_loop:")
    w(f"  s_add_u32 s{sTmp}, s{sT}, 1")
    w(f"  s_cmp_ge_u32 s{sTmp}, {PERW}")
    w(f"  s_cselect_b32 s{SN}, s{sVb}, s{sKb}")
    w(f"  s_cselect_b32 s{SN+1}, s{sVb+1}, s{sKb+1}")
    w(f"  s_cselect_b32 s{SA}, s12, s10")
    w(f"  s_cselect_b32 s{SA+1}, s13, s11")
    w(f"  s_cmp_ge_u32 s{sTmp}, {TOT}")
    w(f"  s_cselect_b32 s{SN+2}, 0, {HEADB}")
    w(f"  s_cselect_b32 s{SA+2}, 0, 65536")
    w(f"  s_and_b32 s{sTmp}, s{sTmp}, {PERW-1}")
    w(f"  s_mul_i32 s{sTmp}, s{sTmp}, {NW}")
    w(f"  s_add_u32 s{sTmp}, s{sTmp}, s{sW}")
    w(f"  s_mul_i32 s{sOffN}, s{sTmp}, {BLKB}")
    w(f"  s_lshl_b32 s{sOffA}, s{sTmp}, 7")
    for u, (st, areg, accf) in enumerate(UNITS):
        n_out = 16 if u == 0 else 17
        w(f"  s_waitcnt vmcnt({n_out})")
        if u == 0:
            for e in range(4):
                w(f"  v_cndmask_b32 v{ALO+e}, 0, v{ARAW+e}, s[{sMLo}:{sMLo+1}]")
                w(f"  v_cndmask_b32 v{AHI+e}, 0, v{ARAW+e}, s[{sMHi}:{sMHi+1}]")
        R = RING + 32 * u
        for m in range(4):
            for dw in range(4):
                x = R + 4 * (2 * m) + dw
                y = R + 4 * (2 * m + 1) + dw
                w(f"  v_perm_b32 v{T + 4*(2*dw) + m}, v{y}, v{x}, s{sSelLo}")
                w(f"  v_perm_b32 v{T + 4*(2*dw+1) + m}, v{y}, v{x}, s{sSelHi}")
            loads(st, u, rows=(2 * m, 2 * m + 1))
        for j in range(8):
            w(f"  v_mfma_f32_16x16x32_bf16 {vr(accf(j))}, {vr(areg)}, {vr(T+4*j)}, {vr(accf(j))}")
        if u == 0:
            loadA()
    w(f"  s_add_u32 s{sT}, s{sT}, 1")
    w(f"  s_cmp_eq_u32 s{sT}, {PERW}")
    w("  s_cbranch_scc1 L_dumpK")
    w(f"  s_cmp_eq_u32 s{sT}, {PERW+1}")
    w("  s_cbranch_scc1 L_redK")
    w(f"  s_cmp_eq_u32 s{sT}, {PERW+2}")
    w("  s_cbranch_scc1 L_soft")
    w(f"  s_cmp_lt_u32 s{sT}, {TOT}")
    w("  s_cbranch_scc1 L_loop")
    w("  s_branch L_tail")

    def dump():
        w("  s_nop 7")
        w("  s_nop 1")
        for j in range(8):
            w(f"  ds_write_b128 v{vWP}, {vr(accP(j))} offset:{j*JS}")
        w(f"  s_mov_b64 exec, s[{sExQ}:{sExQ+1}]")
        for j in range(8):
            w(f"  ds_write_b128 v{vWQ}, {vr(accQ(j))} offset:{j*JS}")
        w("  s_mov_b64 exec, -1")

    def reduce_partials(dst):
        nb = NPART // 8
        for b in range(nb):
            for p in range(8):
                pp = b * 8 + p
                off = pp * PS
                if off <= 65535 - 0:
                    w(f"  ds_read_b128 {vr(T+4*p)}, v{vRD} offset:{off}")
                else:
                    w(f"  ds_read_b128 {vr(T+4*p)}, v{vRD2} offset:{off-HALF}")
            for p in range(8):
                w(f"  s_waitcnt lgkmcnt({7-p})")
                for e in range(4):
                    if b == 0 and p == 0:
                        w(f"  v_mov_b32 v{dst+e}, v{T+4*p+e}")
                    else:
                        w(f"  v_add_f32 v{dst+e}, v{dst+e}, v{T+4*p+e}")

    HALF = 8 * PS
    vRD2 = ARAW

    w("L_dumpK:")
    stamp(3)
    dump()
    for r in range(64):
        w(f"  v_mov_b32 v{ACC+r}, 0")
    w("  s_branch L_loop")

    w("L_redK:")
    w("  s_waitcnt lgkmcnt(0)")
    w("  s_barrier")
    w(f"  s_cmp_ge_u32 s{sW}, 6")
    w("  s_cbranch_scc1 L_loop")
    vRD2 = T + 31 + 0
    vRD2 = vT3
    w(f"  v_add_u32 v{vRD2}, {HALF}, v{vRD}")
    reduce_partials(PB1)
    w(f"  v_cvt_pk_bf16_f32 v{T}, v{PB1}, v{PB1+1}")
    w(f"  v_cvt_pk_bf16_f32 v{T+1}, v{PB1+2}, v{PB1+3}")
    w(f"  ds_write_b16 v{vT0}, v{T} offset:0")
    w(f"  ds_write_b16_d16_hi v{vT0}, v{T} offset:{KPROW}")
    w(f"  ds_write_b16 v{vT0}, v{T+1} offset:{2*KPROW}")
    w(f"  ds_write_b16_d16_hi v{vT0}, v{T+1} offset:{3*KPROW}")
    w("  s_branch L_loop")

    w("L_soft:")
    w("  s_waitcnt lgkmcnt(0)")
    w("  s_barrier")
    S = T + 24
    for e in range(4):
        w(f"  v_mov_b32 v{S+e}, 0")
    for t in range(6):
        w(f"  ds_read_b128 {vr(T+4*t)}, v{vT1} offset:{t*64}")
    for t in range(6):
        w(f"  s_waitcnt lgkmcnt({5-t})")
        w(f"  v_mfma_f32_16x16x32_bf16 {vr(S)}, {vr(T+4*t)}, {vr(QF+4*t)}, {vr(S)}")
    w("  s_nop 7")
    w("  s_nop 1")
    w(f"  s_mov_b32 s{sC0}, 0x3d93cd3a")
    w(f"  s_mov_b32 s{sC1}, 0x3fb8aa3b")
    X = T
    w(f"  v_cvt_pk_bf16_f32 v{X}, v{S}, v{S+1}")
    w(f"  v_cvt_pk_bf16_f32 v{X+1}, v{S+2}, v{S+3}")
    w(f"  v_lshlrev_b32 v{S}, 16, v{X}")
    w(f"  v_and_b32 v{S+1}, 0xffff0000, v{X}")
    w(f"  v_lshlrev_b32 v{S+2}, 16, v{X+1}")
    w(f"  v_and_b32 v{S+3}, 0xffff0000, v{X+1}")
    for e in range(4):
        w(f"  v_mul_f32 v{S+e}, s{sC0}, v{S+e}")
    w(f"  v_cvt_pk_bf16_f32 v{X}, v{S}, v{S+1}")
    w(f"  v_cvt_pk_bf16_f32 v{X+1}, v{S+2}, v{S+3}")
    w(f"  v_lshlrev_b32 v{S}, 16, v{X}")
    w(f"  v_and_b32 v{S+1}, 0xffff0000, v{X}")
    w(f"  v_lshlrev_b32 v{S+2}, 16, v{X+1}")
    w(f"  v_and_b32 v{S+3}, 0xffff0000, v{X+1}")
    w(f"  v_max_f32 v{X}, v{S}, v{S+1}")
    w(f"  v_max3_f32 v{X}, v{X}, v{S+2}, v{S+3}")
    w(f"  ds_swizzle_b32 v{X+1}, v{X} offset:0x401F")
    w("  s_waitcnt lgkmcnt(0)")
    w(f"  v_max_f32 v{X}, v{X}, v{X+1}")
    for e in range(4):
        w(f"  v_sub_f32 v{S+e}, v{S+e}, v{X}")
    for e in range(4):
        w(f"  v_mul_f32 v{S+e}, s{sC1}, v{S+e}")
    for e in range(4):
        w(f"  v_exp_f32 v{S+e}, v{S+e}")
    w("  s_nop 0")
    w(f"  v_add_f32 v{X}, v{S}, v{S+1}")
    w(f"  v_add_f32 v{X+1}, v{S+2}, v{S+3}")
    w(f"  v_add_f32 v{X}, v{X}, v{X+1}")
    w(f"  ds_swizzle_b32 v{X+1}, v{X} offset:0x401F")
    w("  s_waitcnt lgkmcnt(0)")
    w(f"  v_add_f32 v{X}, v{X}, v{X+1}")
    w(f"  v_rcp_f32 v{X}, v{X}")
    w("  s_nop 0")
    for e in range(4):
        w(f"  v_mul_f32 v{S+e}, v{S+e}, v{X}")
    w(f"  v_cvt_pk_bf16_f32 v{X}, v{S}, v{S+1}")
    w(f"  v_cvt_pk_bf16_f32 v{X+1}, v{S+2}, v{S+3}")
    w(f"  v_cndmask_b32 v{PB1}, 0, v{X}, s[{sG01}:{sG01+1}]")
    w(f"  v_cndmask_b32 v{PB1+1}, 0, v{X+1}, s[{sG01}:{sG01+1}]")
    w(f"  v_cndmask_b32 v{PB2}, 0, v{X}, s[{sG23}:{sG23+1}]")
    w(f"  v_cndmask_b32 v{PB2+1}, 0, v{X+1}, s[{sG23}:{sG23+1}]")
    w("  s_branch L_loop")

    w("L_tail:")
    stamp(4)
    dump()
    w("  s_waitcnt lgkmcnt(0)")
    w("  s_barrier")
    w(f"  s_cmp_ge_u32 s{sW}, 6")
    w("  s_cbranch_scc1 L_fin")
    w(f"  v_add_u32 v{vRD2}, {HALF}, v{vRD}")
    D = ACC
    reduce_partials(D)
    w(f"  v_cvt_pk_bf16_f32 v{D+4}, v{D}, v{D+1}")
    w(f"  v_cvt_pk_bf16_f32 v{D+5}, v{D+2}, v{D+3}")
    w("  s_nop 1")
    w(f"  v_mfma_f32_16x16x16_bf16 {vr(D+8)}, {vr(D+4,2)}, {vr(PB1,2)}, 0")
    w(f"  v_mfma_f32_16x16x16_bf16 {vr(D+12)}, {vr(D+4,2)}, {vr(PB2,2)}, 0")
    w("  s_nop 7")
    w("  s_nop 1")
    w(f"  v_cvt_pk_bf16_f32 v{D+16}, v{D+8}, v{D+9}")
    w(f"  v_cvt_pk_bf16_f32 v{D+17}, v{D+10}, v{D+11}")
    w(f"  v_cvt_pk_bf16_f32 v{D+18}, v{D+12}, v{D+13}")
    w(f"  v_cvt_pk_bf16_f32 v{D+19}, v{D+14}, v{D+15}")
    w(f"  buffer_store_dwordx2 {vr(D+16,2)}, v{vT2}, s[{SO}:{SO+3}], 0 offen")
    w(f"  buffer_store_dwordx2 {vr(D+18,2)}, v{vT2}, s[{SO}:{SO+3}], 0 offen offset:32")
    w("L_fin:")
    if stamps:
        w("  s_waitcnt vmcnt(0)")
        stamp(5)
        w("  s_waitcnt lgkmcnt(0)")
        if stamps == 1:
            w(f"  s_mul_i32 s92, s2, {NW}")
            w(f"  s_add_u32 s92, s92, s{sW}")
            w("  s_lshl_b32 s92, s92, 5")
            w("  s_add_u32 s88, s90, s92")
            w("  s_addc_u32 s89, s91, 0")
            w("  s_and_b32 s89, s89, 0xffff")
            w("  s_mov_b32 s90, 32")
            w("  s_mov_b32 s91, 0x00020000")
            for i in range(6):
                w(f"  v_mov_b32 v{ACC+i}, s{64+2*i}")
            w(f"  v_mov_b32 v{ACC+8}, 0")
            w("  s_mov_b64 exec, 1")
            w(f"  buffer_store_dwordx4 {vr(ACC)}, v{ACC+8}, s[88:91], 0 offen")
            w(f"  buffer_store_dwordx2 {vr(ACC+4,2)}, v{ACC+8}, s[88:91], 0 offen offset:16")
        else:
            w("  s_mov_b32 s88, s90")
            w("  s_and_b32 s89, s91, 0xffff")
            w("  s_mov_b32 s90, 256")
            w("  s_mov_b32 s91, 0x00020000")
            w(f"  v_mov_b32 v{ACC+20}, 0")
            w("  s_mov_b64 exec, 1")
            for i in range(6):
                w(f"  v_mov_b32 v{ACC+2*i+1}, s{64+2*i}")
                w(f"  v_not_b32 v{ACC+2*i}, v{ACC+2*i+1}")
                w(f"  buffer_atomic_umax v{ACC+2*i}, v{ACC+20}, s[88:91], 0 offen offset:{8*i}")
                w(f"  buffer_atomic_umax v{ACC+2*i+1}, v{ACC+20}, s[88:91], 0 offen offset:{8*i+4}")
    w("L_end:")
    w("  s_endpgm")
    w('.section .rodata,"a"')
    w(".p2align 6")
    w(f".amdhsa_kernel {KNAME}")
    w(f"  .amdhsa_next_free_vgpr {NV}")
    w("  .amdhsa_next_free_sgpr 96")
    w(f"  .amdhsa_accum_offset {(NV+3)//4*4}")
    w("  .amdhsa_group_segment_fixed_size 0")
    w("  .amdhsa_kernarg_size 64")
    w("  .amdhsa_user_sgpr_count 2")
    w("  .amdhsa_user_sgpr_kernarg_segment_ptr 1")
    w("  .amdhsa_system_sgpr_workgroup_id_x 1")
    w(".end_amdhsa_kernel")
    return "\n".join(o) + "\n"


if __name__ == "__main__":
    out = sys.argv[1] if len(sys.argv) > 1 else "standalone__low_rank_proj_linformer__sampling.s"
    kw = {}
    for a in sys.argv[2:]:
        k_, v_ = a.split("=")
        kw[k_] = int(v_)
    open(out, "w").write(gen(**kw))
```

```python
import sys

KNAME = "standalone__low_rank_proj_linformer__sampling_kernel"

HEADER = """; Kernarg layout for this problem (64 bytes, ptrs only, base s[0:1]):
"""


def gen(nt=True, NW=8, stamps=False):
    o = []
    w = o.append
    NT = " nt" if nt else ""
    def stamp(i):
        if stamps:
            w(f"  s_memrealtime s[{64+2*i}:{65+2*i}]")
    HEADB = 4096 * 384
    BLKB = 64 * 384
    NBLK = 64
    PERW = NBLK // NW
    TOT = 2 * PERW
    JS = 26 * 16
    RS = 8 * JS
    PS = 2 * RS
    NPART = 2 * NW
    KPB = NPART * PS
    KPROW = 400
    LDS = KPB + 8 * KPROW
    LDS = (LDS + 255) // 256 * 256

    vS = [1, 2, 3]
    vA = 4
    vWP, vWQ, vRD = 5, 6, 7
    vT0, vT1, vT2, vT3 = 8, 9, 10, 11
    ARAW, ALO, AHI = 12, 16, 20
    T = 24
    QF = 56
    PB1, PB2 = 80, 82
    ACC = 84
    RING = 148
    NV = RING + 96

    def accP(j): return ACC + 4 * j
    def accQ(j): return ACC + 32 + 4 * j
    def vr(b, n=4): return f"v[{b}:{b+n-1}]"

    SN = 16
    SA = 20
    SQ = 24
    SO = 28
    sKb, sVb = 32, 34
    sW = 36
    sT = 37
    sOffN = 38
    sOffA = 39
    sSelLo, sSelHi = 40, 41
    sMLo, sMHi = 42, 44
    sTmp = 46
    sTmp2 = 47
    sExQ = 48
    sG01, sG23 = 50, 52
    sC0, sC1 = 54, 55

    w(HEADER.rstrip("\n"))
    w(f"; @launch grid=(256,1,1) block=({NW*64},1,1) lds={LDS}")
    w('.amdgcn_target "amdgcn-amd-amdhsa--gfx950"')
    w(".text")
    w(f".globl {KNAME}")
    w(".p2align 8")
    w(f".type {KNAME},@function")
    w(f"{KNAME}:")
    w("  s_cmp_ge_u32 s2, 256")
    w("  s_cbranch_scc1 L_end")
    stamp(0)
    w("  s_load_dwordx8 s[4:11], s[0:1], 0")
    if stamps:
        w(f"  s_load_dwordx2 s[90:91], s[0:1], {56 if stamps == 1 else 48}")
    w("  s_load_dwordx4 s[12:15], s[0:1], 32")
    w("  v_and_b32 v8, 63, v0")
    w("  v_lshrrev_b32 v9, 6, v0")
    w("  v_lshrrev_b32 v10, 4, v8")
    w("  v_and_b32 v11, 15, v8")
    w(f"  v_readfirstlane_b32 s{sW}, v9")
    w("  v_mul_u32_u24 v12, 3072, v10")
    w("  v_lshlrev_b32 v13, 4, v11")
    w(f"  v_add_u32 v{vS[0]}, v12, v13")
    w(f"  v_add_u32 v{vS[2]}, {12288+128}, v{vS[0]}")
    w("  v_and_b32 v14, 7, v11")
    w("  v_lshrrev_b32 v15, 3, v11")
    w("  v_lshlrev_b32 v16, 4, v14")
    w("  v_add_u32 v16, v12, v16")
    w(f"  v_mul_u32_u24 v17, {12288-256}, v15")
    w("  v_add_u32 v16, v16, v17")
    w(f"  v_add_u32 v{vS[1]}, 256, v16")
    w("  v_lshlrev_b32 v16, 13, v14")
    w("  v_lshlrev_b32 v17, 6, v15")
    w("  v_lshlrev_b32 v18, 4, v10")
    w(f"  v_add3_u32 v{vA}, v16, v17, v18")
    w("  v_mul_u32_u24 v19, 384, v11")
    w("  v_add_u32 v19, v19, v18")
    w("  v_lshrrev_b32 v20, 1, v10")
    w("  v_and_b32 v21, 1, v10")
    w("  v_lshlrev_b32 v22, 1, v9")
    w("  v_add_u32 v22, v22, v20")
    w(f"  v_mul_u32_u24 v22, {PS}, v22")
    w(f"  v_mul_u32_u24 v23, {RS}, v21")
    w("  v_add_u32 v22, v22, v23")
    w("  v_lshlrev_b32 v23, 7, v20")
    w(f"  v_add3_u32 v{vWP}, v22, v23, v13")
    w("  v_mul_u32_u24 v23, 384, v20")
    w("  v_add_u32 v24, v22, v13")
    w("  v_add_u32 v24, 256, v24")
    w(f"  v_sub_u32 v{vWQ}, v24, v23")
    w("  v_lshlrev_b32 v22, 1, v9")
    w("  v_add_u32 v22, v22, v20")
    w("  v_lshlrev_b32 v23, 1, v22")
    w("  v_add_u32 v23, v23, v15")
    w("  v_lshlrev_b32 v23, 4, v23")
    w(f"  v_mul_u32_u24 v24, {JS}, v14")
    w(f"  v_mul_u32_u24 v25, {RS}, v21")
    w(f"  v_add3_u32 v{vRD}, v23, v24, v25")
    w("  v_lshlrev_b32 v23, 4, v22")
    w("  v_add_u32 v23, v23, v11")
    w("  v_lshlrev_b32 v23, 1, v23")
    w(f"  v_mul_u32_u24 v24, {4*KPROW}, v21")
    w(f"  v_add_u32 v24, {KPB}, v24")
    w("  v_add_u32 v26, v23, v24")
    w(f"  v_mul_u32_u24 v24, {KPROW}, v14")
    w(f"  v_add_u32 v24, {KPB}, v24")
    w("  v_add_u32 v27, v24, v18")
    w("  v_mul_u32_u24 v24, 384, v11")
    w("  v_lshlrev_b32 v25, 6, v9")
    w("  v_lshlrev_b32 v28, 3, v10")
    w("  v_add3_u32 v28, v24, v25, v28")
    w(f"  v_mov_b32 v{vT0}, v26")
    w(f"  v_mov_b32 v{vT1}, v27")
    w(f"  v_mov_b32 v{vT2}, v28")
    w(f"  s_mov_b32 s{sSelLo}, 0x05040100")
    w(f"  s_mov_b32 s{sSelHi}, 0x07060302")
    w(f"  s_mov_b32 s{sMLo}, 0x00ff00ff")
    w(f"  s_mov_b32 s{sMLo+1}, 0x00ff00ff")
    w(f"  s_mov_b32 s{sMHi}, 0xff00ff00")
    w(f"  s_mov_b32 s{sMHi+1}, 0xff00ff00")
    w(f"  s_mov_b32 s{sExQ}, 0x00ff00ff")
    w(f"  s_mov_b32 s{sExQ+1}, 0xff00ff00")
    w(f"  s_mov_b32 s{sG01}, -1")
    w(f"  s_mov_b32 s{sG01+1}, 0")
    w(f"  s_mov_b32 s{sG23}, 0")
    w(f"  s_mov_b32 s{sG23+1}, -1")
    w(f"  s_mul_i32 s{sTmp}, s2, {HEADB}")
    w(f"  s_mul_i32 s{sTmp2}, s2, 6144")
    w("  s_waitcnt lgkmcnt(0)")
    w(f"  s_add_u32 s{sKb}, s6, s{sTmp}")
    w(f"  s_addc_u32 s{sKb+1}, s7, 0")
    w(f"  s_add_u32 s{sVb}, s8, s{sTmp}")
    w(f"  s_addc_u32 s{sVb+1}, s9, 0")
    w(f"  s_and_b32 s{sKb+1}, s{sKb+1}, 0xffff")
    w(f"  s_and_b32 s{sVb+1}, s{sVb+1}, 0xffff")
    w(f"  s_and_b32 s11, s11, 0xffff")
    w(f"  s_and_b32 s13, s13, 0xffff")
    w(f"  s_mov_b32 s{SN}, s{sKb}")
    w(f"  s_mov_b32 s{SN+1}, s{sKb+1}")
    w(f"  s_mov_b32 s{SN+2}, {HEADB}")
    w(f"  s_mov_b32 s{SN+3}, 0x00020000")
    w(f"  s_mov_b32 s{SA}, s10")
    w(f"  s_mov_b32 s{SA+1}, s11")
    w(f"  s_mov_b32 s{SA+2}, 65536")
    w(f"  s_mov_b32 s{SA+3}, 0x00020000")
    w(f"  s_add_u32 s{SQ}, s4, s{sTmp2}")
    w(f"  s_addc_u32 s{SQ+1}, s5, 0")
    w(f"  s_and_b32 s{SQ+1}, s{SQ+1}, 0xffff")
    w(f"  s_mov_b32 s{SQ+2}, 6144")
    w(f"  s_mov_b32 s{SQ+3}, 0x00020000")
    w(f"  s_add_u32 s{SO}, s14, s{sTmp2}")
    w(f"  s_addc_u32 s{SO+1}, s15, 0")
    w(f"  s_and_b32 s{SO+1}, s{SO+1}, 0xffff")
    w(f"  s_mov_b32 s{SO+2}, 6144")
    w(f"  s_mov_b32 s{SO+3}, 0x00020000")
    w(f"  s_mul_i32 s{sOffN}, s{sW}, {BLKB}")
    w(f"  s_lshl_b32 s{sOffA}, s{sW}, 7")
    w(f"  s_mov_b32 s{sT}, 0")

    def loads(unit_set, ring_slot, rows=range(8)):
        for i in rows:
            w(f"  buffer_load_dwordx4 {vr(RING + 32*ring_slot + 4*i)}, v{vS[unit_set]}, s[{SN}:{SN+3}], s{sOffN} offen offset:{i*384}{NT}")

    def loadA():
        w(f"  buffer_load_dwordx4 {vr(ARAW)}, v{vA}, s[{SA}:{SA+3}], s{sOffA} offen")

    UNITS = [(1, ARAW, accQ), (0, ALO, accP), (2, AHI, accP)]

    for t in range(6):
        w(f"  buffer_load_dwordx4 {vr(QF+4*t)}, v19, s[{SQ}:{SQ+3}], 0 offen offset:{t*64}")
    loads(UNITS[0][0], 0)
    loadA()
    loads(UNITS[1][0], 1)
    loads(UNITS[2][0], 2)
    stamp(1)
    for r in range(64):
        w(f"  v_mov_b32 v{ACC+r}, 0")
    if stamps:
        w("  s_waitcnt vmcnt(24)")
        stamp(2)

    w("L_loop:")
    w(f"  s_add_u32 s{sTmp}, s{sT}, 1")
    w(f"  s_cmp_ge_u32 s{sTmp}, {PERW}")
    w(f"  s_cselect_b32 s{SN}, s{sVb}, s{sKb}")
    w(f"  s_cselect_b32 s{SN+1}, s{sVb+1}, s{sKb+1}")
    w(f"  s_cselect_b32 s{SA}, s12, s10")
    w(f"  s_cselect_b32 s{SA+1}, s13, s11")
    w(f"  s_cmp_ge_u32 s{sTmp}, {TOT}")
    w(f"  s_cselect_b32 s{SN+2}, 0, {HEADB}")
    w(f"  s_cselect_b32 s{SA+2}, 0, 65536")
    w(f"  s_and_b32 s{sTmp}, s{sTmp}, {PERW-1}")
    w(f"  s_mul_i32 s{sTmp}, s{sTmp}, {NW}")
    w(f"  s_add_u32 s{sTmp}, s{sTmp}, s{sW}")
    w(f"  s_mul_i32 s{sOffN}, s{sTmp}, {BLKB}")
    w(f"  s_lshl_b32 s{sOffA}, s{sTmp}, 7")
    for u, (st, areg, accf) in enumerate(UNITS):
        n_out = 16 if u == 0 else 17
        w(f"  s_waitcnt vmcnt({n_out})")
        if u == 0:
            for e in range(4):
                w(f"  v_cndmask_b32 v{ALO+e}, 0, v{ARAW+e}, s[{sMLo}:{sMLo+1}]")
                w(f"  v_cndmask_b32 v{AHI+e}, 0, v{ARAW+e}, s[{sMHi}:{sMHi+1}]")
        R = RING + 32 * u
        for m in range(4):
            for dw in range(4):
                x = R + 4 * (2 * m) + dw
                y = R + 4 * (2 * m + 1) + dw
                w(f"  v_perm_b32 v{T + 4*(2*dw) + m}, v{y}, v{x}, s{sSelLo}")
                w(f"  v_perm_b32 v{T + 4*(2*dw+1) + m}, v{y}, v{x}, s{sSelHi}")
            loads(st, u, rows=(2 * m, 2 * m + 1))
        for j in range(8):
            w(f"  v_mfma_f32_16x16x32_bf16 {vr(accf(j))}, {vr(areg)}, {vr(T+4*j)}, {vr(accf(j))}")
        if u == 0:
            loadA()
    w(f"  s_add_u32 s{sT}, s{sT}, 1")
    w(f"  s_cmp_eq_u32 s{sT}, {PERW}")
    w("  s_cbranch_scc1 L_dumpK")
    w(f"  s_cmp_eq_u32 s{sT}, {PERW+1}")
    w("  s_cbranch_scc1 L_redK")
    w(f"  s_cmp_eq_u32 s{sT}, {PERW+2}")
    w("  s_cbranch_scc1 L_soft")
    w(f"  s_cmp_lt_u32 s{sT}, {TOT}")
    w("  s_cbranch_scc1 L_loop")
    w("  s_branch L_tail")

    def dump():
        w("  s_nop 7")
        w("  s_nop 1")
        for j in range(8):
            w(f"  ds_write_b128 v{vWP}, {vr(accP(j))} offset:{j*JS}")
        w(f"  s_mov_b64 exec, s[{sExQ}:{sExQ+1}]")
        for j in range(8):
            w(f"  ds_write_b128 v{vWQ}, {vr(accQ(j))} offset:{j*JS}")
        w("  s_mov_b64 exec, -1")

    def reduce_partials(dst):
        nb = NPART // 8
        for b in range(nb):
            for p in range(8):
                pp = b * 8 + p
                off = pp * PS
                if off <= 65535 - 0:
                    w(f"  ds_read_b128 {vr(T+4*p)}, v{vRD} offset:{off}")
                else:
                    w(f"  ds_read_b128 {vr(T+4*p)}, v{vRD2} offset:{off-HALF}")
            for p in range(8):
                w(f"  s_waitcnt lgkmcnt({7-p})")
                for e in range(4):
                    if b == 0 and p == 0:
                        w(f"  v_mov_b32 v{dst+e}, v{T+4*p+e}")
                    else:
                        w(f"  v_add_f32 v{dst+e}, v{dst+e}, v{T+4*p+e}")

    HALF = 8 * PS
    vRD2 = ARAW

    w("L_dumpK:")
    stamp(3)
    dump()
    for r in range(64):
        w(f"  v_mov_b32 v{ACC+r}, 0")
    w("  s_branch L_loop")

    w("L_redK:")
    w("  s_waitcnt lgkmcnt(0)")
    w("  s_barrier")
    w(f"  s_cmp_ge_u32 s{sW}, 6")
    w("  s_cbranch_scc1 L_loop")
    vRD2 = T + 31 + 0
    vRD2 = vT3
    w(f"  v_add_u32 v{vRD2}, {HALF}, v{vRD}")
    reduce_partials(PB1)
    w(f"  v_cvt_pk_bf16_f32 v{T}, v{PB1}, v{PB1+1}")
    w(f"  v_cvt_pk_bf16_f32 v{T+1}, v{PB1+2}, v{PB1+3}")
    w(f"  ds_write_b16 v{vT0}, v{T} offset:0")
    w(f"  ds_write_b16_d16_hi v{vT0}, v{T} offset:{KPROW}")
    w(f"  ds_write_b16 v{vT0}, v{T+1} offset:{2*KPROW}")
    w(f"  ds_write_b16_d16_hi v{vT0}, v{T+1} offset:{3*KPROW}")
    w("  s_branch L_loop")

    w("L_soft:")
    w("  s_waitcnt lgkmcnt(0)")
    w("  s_barrier")
    S = T + 24
    for e in range(4):
        w(f"  v_mov_b32 v{S+e}, 0")
    for t in range(6):
        w(f"  ds_read_b128 {vr(T+4*t)}, v{vT1} offset:{t*64}")
    for t in range(6):
        w(f"  s_waitcnt lgkmcnt({5-t})")
        w(f"  v_mfma_f32_16x16x32_bf16 {vr(S)}, {vr(T+4*t)}, {vr(QF+4*t)}, {vr(S)}")
    w("  s_nop 7")
    w("  s_nop 1")
    w(f"  s_mov_b32 s{sC0}, 0x3d93cd3a")
    w(f"  s_mov_b32 s{sC1}, 0x3fb8aa3b")
    X = T
    w(f"  v_cvt_pk_bf16_f32 v{X}, v{S}, v{S+1}")
    w(f"  v_cvt_pk_bf16_f32 v{X+1}, v{S+2}, v{S+3}")
    w(f"  v_lshlrev_b32 v{S}, 16, v{X}")
    w(f"  v_and_b32 v{S+1}, 0xffff0000, v{X}")
    w(f"  v_lshlrev_b32 v{S+2}, 16, v{X+1}")
    w(f"  v_and_b32 v{S+3}, 0xffff0000, v{X+1}")
    for e in range(4):
        w(f"  v_mul_f32 v{S+e}, s{sC0}, v{S+e}")
    w(f"  v_cvt_pk_bf16_f32 v{X}, v{S}, v{S+1}")
    w(f"  v_cvt_pk_bf16_f32 v{X+1}, v{S+2}, v{S+3}")
    w(f"  v_lshlrev_b32 v{S}, 16, v{X}")
    w(f"  v_and_b32 v{S+1}, 0xffff0000, v{X}")
    w(f"  v_lshlrev_b32 v{S+2}, 16, v{X+1}")
    w(f"  v_and_b32 v{S+3}, 0xffff0000, v{X+1}")
    w(f"  v_max_f32 v{X}, v{S}, v{S+1}")
    w(f"  v_max3_f32 v{X}, v{X}, v{S+2}, v{S+3}")
    w(f"  ds_swizzle_b32 v{X+1}, v{X} offset:0x401F")
    w("  s_waitcnt lgkmcnt(0)")
    w(f"  v_max_f32 v{X}, v{X}, v{X+1}")
    for e in range(4):
        w(f"  v_sub_f32 v{S+e}, v{S+e}, v{X}")
    for e in range(4):
        w(f"  v_mul_f32 v{S+e}, s{sC1}, v{S+e}")
    for e in range(4):
        w(f"  v_exp_f32 v{S+e}, v{S+e}")
    w("  s_nop 0")
    w(f"  v_add_f32 v{X}, v{S}, v{S+1}")
    w(f"  v_add_f32 v{X+1}, v{S+2}, v{S+3}")
    w(f"  v_add_f32 v{X}, v{X}, v{X+1}")
    w(f"  ds_swizzle_b32 v{X+1}, v{X} offset:0x401F")
    w("  s_waitcnt lgkmcnt(0)")
    w(f"  v_add_f32 v{X}, v{X}, v{X+1}")
    w(f"  v_rcp_f32 v{X}, v{X}")
    w("  s_nop 0")
    for e in range(4):
        w(f"  v_mul_f32 v{S+e}, v{S+e}, v{X}")
    w(f"  v_cvt_pk_bf16_f32 v{X}, v{S}, v{S+1}")
    w(f"  v_cvt_pk_bf16_f32 v{X+1}, v{S+2}, v{S+3}")
    w(f"  v_cndmask_b32 v{PB1}, 0, v{X}, s[{sG01}:{sG01+1}]")
    w(f"  v_cndmask_b32 v{PB1+1}, 0, v{X+1}, s[{sG01}:{sG01+1}]")
    w(f"  v_cndmask_b32 v{PB2}, 0, v{X}, s[{sG23}:{sG23+1}]")
    w(f"  v_cndmask_b32 v{PB2+1}, 0, v{X+1}, s[{sG23}:{sG23+1}]")
    w("  s_branch L_loop")

    w("L_tail:")
    stamp(4)
    dump()
    w("  s_waitcnt lgkmcnt(0)")
    w("  s_barrier")
    w(f"  s_cmp_ge_u32 s{sW}, 6")
    w("  s_cbranch_scc1 L_fin")
    w(f"  v_add_u32 v{vRD2}, {HALF}, v{vRD}")
    D = ACC
    reduce_partials(D)
    w(f"  v_cvt_pk_bf16_f32 v{D+4}, v{D}, v{D+1}")
    w(f"  v_cvt_pk_bf16_f32 v{D+5}, v{D+2}, v{D+3}")
    w("  s_nop 1")
    w(f"  v_mfma_f32_16x16x16_bf16 {vr(D+8)}, {vr(D+4,2)}, {vr(PB1,2)}, 0")
    w(f"  v_mfma_f32_16x16x16_bf16 {vr(D+12)}, {vr(D+4,2)}, {vr(PB2,2)}, 0")
    w("  s_nop 7")
    w("  s_nop 1")
    w(f"  v_cvt_pk_bf16_f32 v{D+16}, v{D+8}, v{D+9}")
    w(f"  v_cvt_pk_bf16_f32 v{D+17}, v{D+10}, v{D+11}")
    w(f"  v_cvt_pk_bf16_f32 v{D+18}, v{D+12}, v{D+13}")
    w(f"  v_cvt_pk_bf16_f32 v{D+19}, v{D+14}, v{D+15}")
    w(f"  buffer_store_dwordx2 {vr(D+16,2)}, v{vT2}, s[{SO}:{SO+3}], 0 offen")
    w(f"  buffer_store_dwordx2 {vr(D+18,2)}, v{vT2}, s[{SO}:{SO+3}], 0 offen offset:32")
    w("L_fin:")
    if stamps:
        w("  s_waitcnt vmcnt(0)")
        stamp(5)
        w("  s_waitcnt lgkmcnt(0)")
        if stamps == 1:
            w(f"  s_mul_i32 s92, s2, {NW}")
            w(f"  s_add_u32 s92, s92, s{sW}")
            w("  s_lshl_b32 s92, s92, 5")
            w("  s_add_u32 s88, s90, s92")
            w("  s_addc_u32 s89, s91, 0")
            w("  s_and_b32 s89, s89, 0xffff")
            w("  s_mov_b32 s90, 32")
            w("  s_mov_b32 s91, 0x00020000")
            for i in range(6):
                w(f"  v_mov_b32 v{ACC+i}, s{64+2*i}")
            w(f"  v_mov_b32 v{ACC+8}, 0")
            w("  s_mov_b64 exec, 1")
            w(f"  buffer_store_dwordx4 {vr(ACC)}, v{ACC+8}, s[88:91], 0 offen")
            w(f"  buffer_store_dwordx2 {vr(ACC+4,2)}, v{ACC+8}, s[88:91], 0 offen offset:16")
        else:
            w(f"  s_cmp_lg_u32 s{sW}, 0")
            w("  s_cbranch_scc1 L_end")
            w("  s_mov_b32 s88, s90")
            w("  s_and_b32 s89, s91, 0xffff")
            w("  s_mov_b32 s90, 256")
            w("  s_mov_b32 s91, 0x00020000")
            w("  s_and_b32 s92, s2, 7")
            w("  s_lshl_b32 s92, s92, 2")
            w(f"  v_mov_b32 v{ACC+20}, s92")
            w("  s_mov_b64 exec, 1")
            w(f"  v_mov_b32 v{ACC}, s{64+10}")
            w(f"  v_mov_b32 v{ACC+1}, s64")
            w(f"  v_not_b32 v{ACC+1}, v{ACC+1}")
            w(f"  buffer_atomic_umax v{ACC}, v{ACC+20}, s[88:91], 0 offen")
            w(f"  buffer_atomic_umax v{ACC+1}, v{ACC+20}, s[88:91], 0 offen offset:32")
    w("L_end:")
    w("  s_endpgm")
    w('.section .rodata,"a"')
    w(".p2align 6")
    w(f".amdhsa_kernel {KNAME}")
    w(f"  .amdhsa_next_free_vgpr {NV}")
    w("  .amdhsa_next_free_sgpr 96")
    w(f"  .amdhsa_accum_offset {(NV+3)//4*4}")
    w("  .amdhsa_group_segment_fixed_size 0")
    w("  .amdhsa_kernarg_size 64")
    w("  .amdhsa_user_sgpr_count 2")
    w("  .amdhsa_user_sgpr_kernarg_segment_ptr 1")
    w("  .amdhsa_system_sgpr_workgroup_id_x 1")
    w(".end_amdhsa_kernel")
    return "\n".join(o) + "\n"


if __name__ == "__main__":
    out = sys.argv[1] if len(sys.argv) > 1 else "standalone__low_rank_proj_linformer__sampling.s"
    kw = {}
    for a in sys.argv[2:]:
        k_, v_ = a.split("=")
        kw[k_] = int(v_)
    open(out, "w").write(gen(**kw))
```

```python
import sys

KNAME = "standalone__low_rank_proj_linformer__sampling_kernel"

HEADER = """; Kernarg layout for this problem (64 bytes, ptrs only, base s[0:1]):
"""


def gen(nt=1, stamps=0, stag=1, minlds=84000, hmap=0, fc=1, D=6, maxtry=4096, csleep=4, ssleep=1, cst=1, cld=1, stpol='sc1', ldpol='sc1', gstride=1280, pubstep=2, full=1, lstride=128, S1=16, S2=8, SW=96, phm=5):
    NW = 4
    o = []
    w = o.append
    NT = " nt" if nt else ""

    def stamp(i):
        if stamps:
            w(f"  s_memrealtime s[{64+2*i}:{65+2*i}]")

    HEADB = 4096 * 384
    BLKB = 64 * 384
    NBLK = 64
    JS = 26 * 16
    RS = 8 * JS
    PS = 2 * RS
    NPART = 2 * NW
    KPB = NPART * PS
    KPROW = 400
    PFR = KPB + 8 * KPROW
    CTR = PFR + 512
    LDS = CTR + 32
    LDS = max(LDS, minlds)
    LDS = (LDS + 255) // 256 * 256
    WSOFF = 1 << 20

    vS = [1, 2, 3]
    vA = 4
    vWP, vWQ, vRD = 5, 6, 7
    vKW, vKR, vOUT, vRD2 = 8, 9, 10, 11
    ARAW, ALO, AHI = 12, 16, 20
    T = 24
    QF = 56
    vCL, vCT, vPF, vOne = 80, 81, 82, 83
    ACC = 84
    RING = 148
    vLIM = RING + 96
    NV = RING + 100

    def accP(j): return ACC + 4 * j
    def accQ(j): return ACC + 32 + 4 * j
    def vr(b, n=4): return f"v[{b}:{b+n-1}]"

    SN, SA, SQ, SO = 16, 20, 24, 28
    sKb, sVb = 32, 34
    sW, sCur, sOffN, sOffA = 36, 37, 38, 39
    sSelLo, sSelHi = 40, 41
    sMLo, sMHi = 42, 44
    sTmp, sTmp2 = 46, 47
    sExQ = 48
    sG01, sG23 = 50, 52
    sC0, sC1 = 54, 55
    sNxt, sDump, sPi, sStag = 56, 57, 58, 59
    SD = 60
    sLim, sTry, sOff, sSlot, sLast = 96, 97, 98, 99, 100
    sWG = 3

    nthreads = (NW + (1 if fc else 0)) * 64
    w(HEADER.rstrip("\n"))
    w(f"; @launch grid=(256,1,1) block=({nthreads},1,1) lds={LDS}")
    w('.amdgcn_target "amdgcn-amd-amdhsa--gfx950"')
    w(".text")
    w(f".globl {KNAME}")
    w(".p2align 8")
    w(f".type {KNAME},@function")
    w(f"{KNAME}:")
    w("  s_cmp_ge_u32 s2, 256")
    w("  s_cbranch_scc1 L_end")
    stamp(0)
    w("  s_mov_b32 s3, s2")
    if hmap == 1:
        w("  s_lshr_b32 s60, s3, 3")
        w("  s_and_b32 s61, s3, 7")
        w("  s_lshl_b32 s61, s61, 5")
        w("  s_add_u32 s2, s60, s61")
    w("  s_load_dwordx8 s[4:11], s[0:1], 0")
    w("  s_load_dwordx4 s[12:15], s[0:1], 32")
    w("  s_load_dwordx2 s[62:63], s[0:1], 56")
    L, WV, G, C, CC, HF, G16, C16, G3K = T, T+1, T+2, T+3, T+4, T+5, T+6, T+7, T+8
    w(f"  v_and_b32 v{L}, 63, v0")
    w(f"  v_lshrrev_b32 v{WV}, 6, v0")
    w(f"  v_lshrrev_b32 v{G}, 4, v{L}")
    w(f"  v_and_b32 v{C}, 15, v{L}")
    w(f"  v_readfirstlane_b32 s{sW}, v{WV}")
    w(f"  v_mul_u32_u24 v{G3K}, 3072, v{G}")
    w(f"  v_lshlrev_b32 v{C16}, 4, v{C}")
    w(f"  v_mov_b32 v{vCT}, {CTR}")
    w(f"  v_mov_b32 v{vOne}, 1")
    if fc:
        w(f"  s_cmp_eq_u32 s{sW}, {NW}")
        w("  s_cbranch_scc1 L_ctrl")
    w(f"  v_add_u32 v{vS[0]}, v{G3K}, v{C16}")
    w(f"  v_add_u32 v{vS[2]}, {12288+128}, v{vS[0]}")
    w(f"  v_and_b32 v{CC}, 7, v{C}")
    w(f"  v_lshrrev_b32 v{HF}, 3, v{C}")
    w(f"  v_lshlrev_b32 v{T+9}, 4, v{CC}")
    w(f"  v_add_u32 v{T+9}, v{G3K}, v{T+9}")
    w(f"  v_mul_u32_u24 v{T+10}, {12288-256}, v{HF}")
    w(f"  v_add_u32 v{T+9}, v{T+9}, v{T+10}")
    w(f"  v_add_u32 v{vS[1]}, 256, v{T+9}")
    w(f"  v_lshlrev_b32 v{T+9}, 13, v{CC}")
    w(f"  v_lshlrev_b32 v{T+10}, 6, v{HF}")
    w(f"  v_lshlrev_b32 v{G16}, 4, v{G}")
    w(f"  v_add3_u32 v{vA}, v{T+9}, v{T+10}, v{G16}")
    w(f"  s_mul_i32 s{sTmp}, s2, {HEADB}")
    w(f"  s_mul_i32 s{sStag}, s2, {stag}")
    w(f"  s_add_u32 s{sTmp2}, s{sStag}, s{sW}")
    w(f"  s_and_b32 s{sTmp2}, s{sTmp2}, {NBLK-1}")
    w(f"  s_mul_i32 s{sOffN}, s{sTmp2}, {BLKB}")
    w(f"  s_lshl_b32 s{sOffA}, s{sTmp2}, 7")
    w(f"  s_mov_b32 s{SN+2}, {HEADB}")
    w(f"  s_mov_b32 s{SN+3}, 0x00020000")
    w(f"  s_mov_b32 s{SA+2}, 65536")
    w(f"  s_mov_b32 s{SA+3}, 0x00020000")
    w("  s_waitcnt lgkmcnt(0)")
    w(f"  s_add_u32 s{sKb}, s6, s{sTmp}")
    w(f"  s_addc_u32 s{sKb+1}, s7, 0")
    w(f"  s_and_b32 s{sKb+1}, s{sKb+1}, 0xffff")
    w(f"  s_mov_b32 s{SN}, s{sKb}")
    w(f"  s_mov_b32 s{SN+1}, s{sKb+1}")
    w(f"  s_mov_b32 s{SA}, s10")
    w(f"  s_and_b32 s{SA+1}, s11, 0xffff")

    def loads(unit_set, ring_slot, rows=range(8)):
        for i in rows:
            w(f"  buffer_load_dwordx4 {vr(RING + 32*ring_slot + 4*i)}, v{vS[unit_set]}, s[{SN}:{SN+3}], s{sOffN} offen offset:{i*384}{NT}")

    def loadA():
        w(f"  buffer_load_dwordx4 {vr(ARAW)}, v{vA}, s[{SA}:{SA+3}], s{sOffA} offen")

    UNITS = [(1, ARAW, accQ), (0, ALO, accP), (2, AHI, accP)]

    loads(UNITS[0][0], 0)
    loadA()
    loads(UNITS[1][0], 1)
    loads(UNITS[2][0], 2)
    stamp(1)
    w(f"  s_add_u32 s{sVb}, s8, s{sTmp}")
    w(f"  s_addc_u32 s{sVb+1}, s9, 0")
    w(f"  s_and_b32 s{sVb+1}, s{sVb+1}, 0xffff")
    w(f"  s_and_b32 s11, s11, 0xffff")
    w(f"  s_and_b32 s13, s13, 0xffff")
    w(f"  s_mul_i32 s{sTmp2}, s2, 6144")
    w(f"  s_add_u32 s{SQ}, s4, s{sTmp2}")
    w(f"  s_addc_u32 s{SQ+1}, s5, 0")
    w(f"  s_and_b32 s{SQ+1}, s{SQ+1}, 0xffff")
    w(f"  s_mov_b32 s{SQ+2}, 6144")
    w(f"  s_mov_b32 s{SQ+3}, 0x00020000")
    w(f"  s_add_u32 s{SO}, s14, s{sTmp2}")
    w(f"  s_addc_u32 s{SO+1}, s15, 0")
    w(f"  s_and_b32 s{SO+1}, s{SO+1}, 0xffff")
    w(f"  s_mov_b32 s{SO+2}, 6144")
    w(f"  s_mov_b32 s{SO+3}, 0x00020000")
    w(f"  s_mov_b32 s{sSelLo}, 0x05040100")
    w(f"  s_mov_b32 s{sSelHi}, 0x07060302")
    w(f"  s_mov_b32 s{sMLo}, 0x00ff00ff")
    w(f"  s_mov_b32 s{sMLo+1}, 0x00ff00ff")
    w(f"  s_mov_b32 s{sMHi}, 0xff00ff00")
    w(f"  s_mov_b32 s{sMHi+1}, 0xff00ff00")
    w(f"  s_mov_b32 s{sExQ}, 0x00ff00ff")
    w(f"  s_mov_b32 s{sExQ+1}, 0xff00ff00")
    w(f"  s_mov_b32 s{sG01}, -1")
    w(f"  s_mov_b32 s{sG01+1}, 0")
    w(f"  s_mov_b32 s{sG23}, 0")
    w(f"  s_mov_b32 s{sG23+1}, -1")
    w(f"  s_mov_b32 s{sCur}, s{sW}")
    w(f"  s_mov_b32 s{sDump}, 0")
    w(f"  s_mov_b32 s{sOff}, 0")
    QO = T + 11
    w(f"  v_mul_u32_u24 v{QO}, 384, v{C}")
    w(f"  v_add_u32 v{QO}, v{QO}, v{G16}")
    for t in range(6):
        w(f"  buffer_load_dwordx4 {vr(QF+4*t)}, v{QO}, s[{SQ}:{SQ+3}], 0 offen offset:{t*64}")
    PART, RH, X1, X2, X3 = T+12, T+13, T+14, T+15, T+16
    w(f"  v_lshrrev_b32 v{PART}, 1, v{G}")
    w(f"  v_and_b32 v{RH}, 1, v{G}")
    w(f"  v_lshlrev_b32 v{X1}, 1, v{WV}")
    w(f"  v_add_u32 v{X1}, v{X1}, v{PART}")
    w(f"  v_mul_u32_u24 v{X1}, {PS}, v{X1}")
    w(f"  v_mul_u32_u24 v{X2}, {RS}, v{RH}")
    w(f"  v_add_u32 v{X1}, v{X1}, v{X2}")
    w(f"  v_lshlrev_b32 v{X3}, 7, v{PART}")
    w(f"  v_add3_u32 v{vWP}, v{X1}, v{X3}, v{C16}")
    w(f"  v_mul_u32_u24 v{X3}, 384, v{PART}")
    w(f"  v_add_u32 v{X1}, v{X1}, v{C16}")
    w(f"  v_add_u32 v{X1}, 256, v{X1}")
    w(f"  v_sub_u32 v{vWQ}, v{X1}, v{X3}")
    w(f"  v_lshlrev_b32 v{X1}, 1, v{PART}")
    w(f"  v_add_u32 v{X1}, v{X1}, v{HF}")
    w(f"  v_lshlrev_b32 v{X1}, 4, v{X1}")
    w(f"  v_mul_u32_u24 v{X3}, {JS}, v{CC}")
    w(f"  v_add3_u32 v{vRD}, v{X1}, v{X3}, v{X2}")
    w(f"  v_lshlrev_b32 v{X1}, 4, v{PART}")
    w(f"  v_add_u32 v{X1}, v{X1}, v{C}")
    w(f"  v_lshlrev_b32 v{X1}, 1, v{X1}")
    w(f"  v_mul_u32_u24 v{X3}, {4*KPROW}, v{RH}")
    w(f"  v_add_u32 v{X3}, {KPB}, v{X3}")
    w(f"  v_add_u32 v{vKW}, v{X1}, v{X3}")
    w(f"  v_mul_u32_u24 v{X3}, {KPROW}, v{CC}")
    w(f"  v_add_u32 v{X3}, {KPB}, v{X3}")
    w(f"  v_add_u32 v{vKR}, v{X3}, v{G16}")
    w(f"  v_mul_u32_u24 v{X1}, 384, v{C}")
    w(f"  v_mul_u32_u24 v{X2}, 96, v{WV}")
    w(f"  v_lshlrev_b32 v{X3}, 3, v{G}")
    w(f"  v_add3_u32 v{vOUT}, v{X1}, v{X2}, v{X3}")
    w(f"  v_mul_u32_u24 v{X1}, {RS}, v{RH}")
    w(f"  v_mul_u32_u24 v{X2}, {JS}, v{CC}")
    w(f"  v_lshlrev_b32 v{X3}, 4, v{HF}")
    w(f"  v_add3_u32 v{X1}, v{X1}, v{X2}, v{X3}")
    w(f"  v_mul_u32_u24 v{X2}, {4*PS}, v{PART}")
    w(f"  v_add_u32 v{X1}, v{X1}, v{X2}")
    w(f"  v_add_u32 v{vRD2}, 64, v{X1}")
    w(f"  v_lshlrev_b32 v{X1}, 3, v{L}")
    w(f"  v_add_u32 v{vPF}, {PFR}, v{X1}")

    def init_counters():
        w(f"  v_mov_b32 v{X1}, {NW}")
        w(f"  v_mov_b32 v{X2}, 0")
        w(f"  v_mov_b32 v{X3}, 0")
        w(f"  v_mov_b32 v{X3+1}, 255")
        w(f"  v_mov_b32 v{X3+2}, 0")
        w(f"  v_mov_b32 v{X3+3}, 0")
        w(f"  ds_write_b128 v{vCT}, {vr(X1)}")
        w(f"  ds_write_b64 v{vCT}, {vr(X3+2,2)} offset:16")
        w("  s_waitcnt lgkmcnt(0)")

    if not fc:
        w(f"  s_cmp_lg_u32 s{sW}, 0")
        w("  s_cbranch_scc1 L_noinit")
        init_counters()
        w("L_noinit:")
    for r in range(64):
        w(f"  v_mov_b32 v{ACC+r}, 0")
    w("  s_barrier")
    if stamps:
        w("  s_waitcnt vmcnt(22)")
        stamp(2)

    def body(first=False):
        extra = 6 if first else 0
        tag = "f" if first else "l"
        w("  s_mov_b64 exec, 1")
        w(f"  ds_add_rtn_u32 v{vCL}, v{vCT}, v{vOne}")
        w("  s_mov_b64 exec, -1")
        if fc:
            w(f"  ds_read_b32 v{vLIM}, v{vCT} offset:12")
        for u, (st, areg, accf) in enumerate(UNITS):
            n_out = (16 if u == 0 else 17) + extra
            w(f"  s_waitcnt vmcnt({n_out})")
            if u == 0:
                w("  s_waitcnt lgkmcnt(0)")
                w(f"  v_readfirstlane_b32 s{sNxt}, v{vCL}")
                if fc:
                    w(f"  v_readfirstlane_b32 s{sLim}, v{vLIM}")
                for e in range(4):
                    w(f"  v_cndmask_b32 v{ALO+e}, 0, v{ARAW+e}, s[{sMLo}:{sMLo+1}]")
                    w(f"  v_cndmask_b32 v{AHI+e}, 0, v{ARAW+e}, s[{sMHi}:{sMHi+1}]")
                if fc:
                    w(f"  s_cmp_gt_u32 s{sNxt}, s{sLim}")
                    w(f"  s_cbranch_scc1 L_stall_{tag}")
                    w(f"L_cont_{tag}:")
                w(f"  s_cmp_ge_u32 s{sNxt}, {NBLK}")
                w(f"  s_cselect_b32 s{SN}, s{sVb}, s{sKb}")
                w(f"  s_cselect_b32 s{SN+1}, s{sVb+1}, s{sKb+1}")
                w(f"  s_cselect_b32 s{SA}, s12, s10")
                w(f"  s_cselect_b32 s{SA+1}, s13, s11")
                w(f"  s_cmp_ge_u32 s{sNxt}, {2*NBLK}")
                w(f"  s_cselect_b32 s{SN+2}, 0, {HEADB}")
                w(f"  s_cselect_b32 s{SA+2}, 0, 65536")
                w(f"  s_add_u32 s{sTmp}, s{sNxt}, s{sStag}")
                w(f"  s_and_b32 s{sTmp}, s{sTmp}, {NBLK-1}")
                w(f"  s_mul_i32 s{sOffN}, s{sTmp}, {BLKB}")
                w(f"  s_lshl_b32 s{sOffA}, s{sTmp}, 7")
            R = RING + 32 * u
            for m in range(4):
                for dw in range(4):
                    x = R + 4 * (2 * m) + dw
                    y = R + 4 * (2 * m + 1) + dw
                    w(f"  v_perm_b32 v{T + 4*(2*dw) + m}, v{y}, v{x}, s{sSelLo}")
                    w(f"  v_perm_b32 v{T + 4*(2*dw+1) + m}, v{y}, v{x}, s{sSelHi}")
                loads(st, u, rows=(2 * m, 2 * m + 1))
            for j in range(8):
                w(f"  v_mfma_f32_16x16x32_bf16 {vr(accf(j))}, {vr(areg)}, {vr(T+4*j)}, {vr(accf(j))}")
            if u == 0:
                loadA()

    def after_body():
        w(f"  s_mov_b32 s{sCur}, s{sNxt}")
        w(f"  s_cmp_lt_u32 s{sCur}, {NBLK}")
        w("  s_cbranch_scc1 L_loop")
        w(f"  s_cmp_eq_u32 s{sDump}, 0")
        w("  s_cbranch_scc1 L_dumpK")

    body(first=True)
    after_body()
    w("  s_branch L_chk")
    w("L_loop:")
    body()
    after_body()
    w("L_chk:")
    w(f"  s_cmp_lt_u32 s{sCur}, {2*NBLK}")
    w("  s_cbranch_scc1 L_loop")
    w("  s_branch L_tail")

    def dump():
        w("  s_nop 7")
        w("  s_nop 1")
        for j in range(8):
            w(f"  ds_write_b128 v{vWP}, {vr(accP(j))} offset:{j*JS}")
        w(f"  s_mov_b64 exec, s[{sExQ}:{sExQ+1}]")
        for j in range(8):
            w(f"  ds_write_b128 v{vWQ}, {vr(accQ(j))} offset:{j*JS}")
        w("  s_mov_b64 exec, -1")

    if fc:
        for tag in ("f", "l"):
            w(f"L_stall_{tag}:")
            w(f"  s_cmp_ge_u32 s{sNxt}, {2*NBLK}")
            w(f"  s_cbranch_scc1 L_cont_{tag}")
            w(f"  s_cmp_lg_u32 s{sOff}, 0")
            w(f"  s_cbranch_scc1 L_cont_{tag}")
            w(f"  s_mov_b32 s{sTry}, 0")
            w(f"L_st_{tag}:")
            w(f"  s_sleep {ssleep}")
            w(f"  ds_read_b32 v{vLIM}, v{vCT} offset:12")
            w("  s_waitcnt lgkmcnt(0)")
            w(f"  v_readfirstlane_b32 s{sLim}, v{vLIM}")
            w("  s_nop 3")
            w(f"  s_cmp_le_u32 s{sNxt}, s{sLim}")
            w(f"  s_cbranch_scc1 L_cont_{tag}")
            w(f"  s_add_u32 s{sTry}, s{sTry}, 1")
            w(f"  s_cmp_lt_u32 s{sTry}, {maxtry}")
            w(f"  s_cbranch_scc1 L_st_{tag}")
            w(f"  s_mov_b32 s{sOff}, 1")
            w(f"  s_branch L_cont_{tag}")

        w("L_ctrl:")
        init_counters()
        w("  s_setprio 3")
        w(f"  s_lshr_b32 s{sTry}, s{sWG}, 3")
        w(f"  s_mul_i32 s{sTry}, s{sTry}, {gstride}")
        w(f"  s_add_u32 s{sTry}, s{sTry}, {WSOFF}")
        w(f"  s_add_u32 s{SD}, s62, s{sTry}")
        w(f"  s_addc_u32 s{SD+1}, s63, 0")
        w(f"  s_and_b32 s{SD+1}, s{SD+1}, 0xffff")
        if not full:
            w(f"  s_mov_b32 s{SD+2}, 32")
            w(f"  s_mov_b32 s{SD+3}, 0x00020000")
            w(f"  s_and_b32 s{sSlot}, s{sWG}, 7")
            w(f"  s_lshl_b32 s{sSlot}, s{sSlot}, 2")
            w(f"  v_and_b32 v1, 7, v{L}")
            w("  v_lshlrev_b32 v1, 2, v1")
        else:
            w(f"  s_mov_b32 s{SD+2}, {8*lstride}")
            w(f"  s_mov_b32 s{SD+3}, 0x00020000")
            w(f"  s_and_b32 s{sSlot}, s{sWG}, 7")
            w(f"  s_mul_i32 s{sSlot}, s{sSlot}, {lstride}")
            w(f"  v_and_b32 v1, 7, v{L}")
            w(f"  v_lshlrev_b32 v6, 4, v1")
            w(f"  v_mul_u32_u24 v1, {lstride}, v1")
        w(f"  s_lshr_b32 s{sTmp}, s{sWG}, 3")
        w(f"  s_mul_i32 s{sTmp}, s{sTmp}, {phm}")
        w(f"  s_and_b32 s{sTmp}, s{sTmp}, {S1-1}")
        w(f"  s_sub_u32 s{sLast}, {S1}, s{sTmp}")
        w(f"  v_mov_b32 v8, s{sLast}")
        w(f"  v_mov_b32 v9, s{sLast}")
        w(f"  v_mov_b32 v10, s{sLast}")
        w(f"  v_mov_b32 v11, s{sLast}")
        w(f"  s_mov_b64 exec, 255")
        if cst:
            w(f"  buffer_store_dwordx4 v[8:11], v6, s[{SD}:{SD+3}], s{sSlot} offen {stpol}")
        w("  s_mov_b64 exec, -1")
        w("  s_barrier")
        w("L_cl:")
        w(f"  ds_read_b32 v2, v{vCT}")
        w("  s_waitcnt lgkmcnt(0)")
        w(f"  v_readfirstlane_b32 s{sNxt}, v2")
        w("  s_nop 3")
        w(f"  s_cmp_ge_u32 s{sNxt}, {2*NBLK}")
        w("  s_cbranch_scc1 L_cfin")
        w(f"  s_cmp_lt_u32 s{sNxt}, s{sLast}")
        w("  s_cbranch_scc1 L_cnopub")
        w(f"  s_cmp_ge_u32 s{sLast}, {SW}")
        w(f"  s_cselect_b32 s{sTmp}, {S2}, {S1}")
        w(f"  s_add_u32 s{sLast}, s{sLast}, s{sTmp}")
        w("L_cpub:")
        w(f"  v_mov_b32 v8, s{sLast}")
        w(f"  v_mov_b32 v9, s{sLast}")
        w(f"  v_mov_b32 v10, s{sLast}")
        w(f"  v_mov_b32 v11, s{sLast}")
        w(f"  s_mov_b64 exec, 255")
        if cst:
            w(f"  buffer_store_dwordx4 v[8:11], v6, s[{SD}:{SD+3}], s{sSlot} offen {stpol}")
        w("  s_mov_b64 exec, -1")
        w("L_cnopub:")
        w(f"  buffer_load_dword v4, v1, s[{SD}:{SD+3}], 0 offen {ldpol}")
        w("  s_waitcnt vmcnt(0)")
        for i in range(8):
            w(f"  v_readlane_b32 s{64+i}, v4, {i}")
        w("  s_nop 3")
        for i in range(1, 8):
            w(f"  s_min_u32 s64, s64, s{64+i}")
        w(f"  s_min_u32 s64, s64, 250")
        w(f"  s_add_u32 s64, s64, {D}")
        w("  v_mov_b32 v5, s64")
        w("  s_mov_b64 exec, 1")
        w(f"  ds_write_b32 v{vCT}, v5 offset:12")
        w("  s_mov_b64 exec, -1")
        if csleep:
            w(f"  s_sleep {csleep}")
        w("  s_branch L_cl")
        w("L_cfin:")
        w("  v_mov_b32 v8, 255")
        w("  v_mov_b32 v9, 255")
        w("  v_mov_b32 v10, 255")
        w("  v_mov_b32 v11, 255")
        w(f"  s_mov_b64 exec, 255")
        if cst:
            w(f"  buffer_store_dwordx4 v[8:11], v6, s[{SD}:{SD+3}], s{sSlot} offen {stpol}")
        w("L_cexit:")
        w("  v_mov_b32 v5, 255")
        w("  s_mov_b64 exec, 1")
        w(f"  ds_write_b32 v{vCT}, v5 offset:12")
        w("  s_endpgm")

    def reduce_partials(dst, va):
        for p in range(8):
            w(f"  ds_read_b128 {vr(T+4*p)}, v{va} offset:{p*PS}")
        for p in range(8):
            w(f"  s_waitcnt lgkmcnt({7-p})")
            for e in range(4):
                if p == 0:
                    w(f"  v_mov_b32 v{dst+e}, v{T+4*p+e}")
                else:
                    w(f"  v_add_f32 v{dst+e}, v{dst+e}, v{T+4*p+e}")

    w("L_dumpK:")
    stamp(3)
    w(f"  s_mov_b32 s{sDump}, 1")
    dump()
    w("  s_mov_b64 exec, 1")
    w(f"  ds_add_rtn_u32 v{vCL}, v{vCT}, v{vOne} offset:4")
    w("  s_mov_b64 exec, -1")
    for r in range(64):
        w(f"  v_mov_b32 v{ACC+r}, 0")
    w("  s_waitcnt lgkmcnt(0)")
    w(f"  v_readfirstlane_b32 s{sTmp}, v{vCL}")
    w("  s_nop 3")
    w(f"  s_cmp_lg_u32 s{sTmp}, {NW-1}")
    w("  s_cbranch_scc1 L_chk")
    SUM = ALO
    VA, VK = AHI, AHI+2
    w(f"  v_mov_b32 v{VA}, v{vRD}")
    w(f"  v_mov_b32 v{VK}, v{vKW}")
    w(f"  s_mov_b32 s{sPi}, 0")
    w("L_kred:")
    reduce_partials(SUM, VA)
    w(f"  v_cvt_pk_bf16_f32 v{T}, v{SUM}, v{SUM+1}")
    w(f"  v_cvt_pk_bf16_f32 v{T+1}, v{SUM+2}, v{SUM+3}")
    w(f"  ds_write_b16 v{VK}, v{T} offset:0")
    w(f"  ds_write_b16_d16_hi v{VK}, v{T} offset:{KPROW}")
    w(f"  ds_write_b16 v{VK}, v{T+1} offset:{2*KPROW}")
    w(f"  ds_write_b16_d16_hi v{VK}, v{T+1} offset:{3*KPROW}")
    w(f"  v_add_u32 v{VA}, 64, v{VA}")
    w(f"  v_add_u32 v{VK}, 64, v{VK}")
    w(f"  s_add_u32 s{sPi}, s{sPi}, 1")
    w(f"  s_cmp_lt_u32 s{sPi}, 6")
    w("  s_waitcnt lgkmcnt(0)")
    w("  s_cbranch_scc1 L_kred")
    S = T + 24
    for e in range(4):
        w(f"  v_mov_b32 v{S+e}, 0")
    for t in range(6):
        w(f"  ds_read_b128 {vr(T+4*t)}, v{vKR} offset:{t*64}")
    w("  s_waitcnt vmcnt(25)")
    for t in range(6):
        w(f"  s_waitcnt lgkmcnt({5-t})")
        w(f"  v_mfma_f32_16x16x32_bf16 {vr(S)}, {vr(T+4*t)}, {vr(QF+4*t)}, {vr(S)}")
    w("  s_nop 7")
    w("  s_nop 1")
    w(f"  s_mov_b32 s{sC0}, 0x3d93cd3a")
    w(f"  s_mov_b32 s{sC1}, 0x3fb8aa3b")
    X = T
    for rep in range(2):
        w(f"  v_cvt_pk_bf16_f32 v{X}, v{S}, v{S+1}")
        w(f"  v_cvt_pk_bf16_f32 v{X+1}, v{S+2}, v{S+3}")
        w(f"  v_lshlrev_b32 v{S}, 16, v{X}")
        w(f"  v_and_b32 v{S+1}, 0xffff0000, v{X}")
        w(f"  v_lshlrev_b32 v{S+2}, 16, v{X+1}")
        w(f"  v_and_b32 v{S+3}, 0xffff0000, v{X+1}")
        if rep == 0:
            for e in range(4):
                w(f"  v_mul_f32 v{S+e}, s{sC0}, v{S+e}")
    w(f"  v_max_f32 v{X}, v{S}, v{S+1}")
    w(f"  v_max3_f32 v{X}, v{X}, v{S+2}, v{S+3}")
    w(f"  ds_swizzle_b32 v{X+1}, v{X} offset:0x401F")
    w("  s_waitcnt lgkmcnt(0)")
    w(f"  v_max_f32 v{X}, v{X}, v{X+1}")
    for e in range(4):
        w(f"  v_sub_f32 v{S+e}, v{S+e}, v{X}")
    for e in range(4):
        w(f"  v_mul_f32 v{S+e}, s{sC1}, v{S+e}")
    for e in range(4):
        w(f"  v_exp_f32 v{S+e}, v{S+e}")
    w("  s_nop 0")
    w(f"  v_add_f32 v{X}, v{S}, v{S+1}")
    w(f"  v_add_f32 v{X+1}, v{S+2}, v{S+3}")
    w(f"  v_add_f32 v{X}, v{X}, v{X+1}")
    w(f"  ds_swizzle_b32 v{X+1}, v{X} offset:0x401F")
    w("  s_waitcnt lgkmcnt(0)")
    w(f"  v_add_f32 v{X}, v{X}, v{X+1}")
    w(f"  v_rcp_f32 v{X}, v{X}")
    w("  s_nop 0")
    for e in range(4):
        w(f"  v_mul_f32 v{S+e}, v{S+e}, v{X}")
    w(f"  v_cvt_pk_bf16_f32 v{X}, v{S}, v{S+1}")
    w(f"  v_cvt_pk_bf16_f32 v{X+1}, v{S+2}, v{S+3}")
    w(f"  ds_write_b64 v{vPF}, {vr(X,2)}")
    w("  s_mov_b64 exec, 1")
    w(f"  ds_write_b32 v{vCT}, v{vOne} offset:8")
    w("  s_mov_b64 exec, -1")
    w("  s_waitcnt lgkmcnt(0)")
    w("  s_branch L_chk")

    w("L_tail:")
    stamp(4)
    w("L_spin:")
    w(f"  ds_read_b32 v{vCL}, v{vCT} offset:8")
    w("  s_waitcnt lgkmcnt(0)")
    w(f"  v_readfirstlane_b32 s{sTmp}, v{vCL}")
    w("  s_nop 3")
    w(f"  s_cmp_lg_u32 s{sTmp}, 0")
    w("  s_cbranch_scc1 L_go")
    w("  s_sleep 1")
    w("  s_branch L_spin")
    w("L_go:")
    dump()
    PB = QF
    w(f"  ds_read_b64 {vr(PB,2)}, v{vPF}")
    w("  s_mov_b64 exec, 1")
    w(f"  ds_add_u32 v{vCT}, v{vOne} offset:16")
    w("  s_mov_b64 exec, -1")
    w(f"  s_mul_i32 s{sTmp}, s{sW}, 96")
    w(f"  v_add_u32 v{vRD}, s{sTmp}, v{vRD}")
    w(f"  v_add_u32 v{vRD2}, s{sTmp}, v{vRD2}")
    w("L_vspin:")
    w(f"  ds_read_b32 v{vCL}, v{vCT} offset:16")
    w("  s_waitcnt lgkmcnt(0)")
    w(f"  v_readfirstlane_b32 s{sTmp}, v{vCL}")
    w("  s_nop 3")
    w(f"  s_cmp_lt_u32 s{sTmp}, {NW}")
    w("  s_cbranch_scc1 L_vspin")
    BA = ACC
    BB = ACC + 32
    for p in range(8):
        w(f"  ds_read_b128 {vr(BA+4*p)}, v{vRD} offset:{p*PS}")
    for p in range(4):
        w(f"  ds_read_b128 {vr(BB+4*p)}, v{vRD2} offset:{p*PS}")
    w(f"  v_cndmask_b32 v{PB+2}, 0, v{PB}, s[{sG01}:{sG01+1}]")
    w(f"  v_cndmask_b32 v{PB+3}, 0, v{PB+1}, s[{sG01}:{sG01+1}]")
    w(f"  v_cndmask_b32 v{PB+4}, 0, v{PB}, s[{sG23}:{sG23+1}]")
    w(f"  v_cndmask_b32 v{PB+5}, 0, v{PB+1}, s[{sG23}:{sG23+1}]")
    for p in range(1, 8):
        w(f"  s_waitcnt lgkmcnt({11-p})")
        for e in range(4):
            w(f"  v_add_f32 v{BA+e}, v{BA+e}, v{BA+4*p+e}")
    Dd = T
    w(f"  v_cvt_pk_bf16_f32 v{Dd}, v{BA}, v{BA+1}")
    w(f"  v_cvt_pk_bf16_f32 v{Dd+1}, v{BA+2}, v{BA+3}")
    for p in range(1, 4):
        w(f"  s_waitcnt lgkmcnt({3-p})")
        for e in range(4):
            w(f"  v_add_f32 v{BB+e}, v{BB+e}, v{BB+4*p+e}")
    w(f"  v_mfma_f32_16x16x16_bf16 {vr(Dd+8)}, {vr(Dd,2)}, {vr(PB+2,2)}, 0")
    w(f"  v_mfma_f32_16x16x16_bf16 {vr(Dd+12)}, {vr(Dd,2)}, {vr(PB+4,2)}, 0")
    for e in range(4):
        w(f"  v_mov_b32 v{BB+4+e}, v{BB+e}")
    w("  s_nop 1")
    for e in range(4):
        w(f"  v_permlane32_swap_b32 v{BB+e}, v{BB+4+e}")
    w("  s_nop 1")
    for e in range(4):
        w(f"  v_add_f32 v{BB+e}, v{BB+e}, v{BB+4+e}")
    w(f"  v_cvt_pk_bf16_f32 v{Dd+2}, v{BB}, v{BB+1}")
    w(f"  v_cvt_pk_bf16_f32 v{Dd+3}, v{BB+2}, v{BB+3}")
    w(f"  v_cvt_pk_bf16_f32 v{Dd+20}, v{Dd+8}, v{Dd+9}")
    w(f"  v_cvt_pk_bf16_f32 v{Dd+21}, v{Dd+10}, v{Dd+11}")
    w(f"  v_mfma_f32_16x16x16_bf16 {vr(Dd+16)}, {vr(Dd+2,2)}, {vr(PB+2,2)}, 0")
    w(f"  v_cvt_pk_bf16_f32 v{Dd+22}, v{Dd+12}, v{Dd+13}")
    w(f"  v_cvt_pk_bf16_f32 v{Dd+23}, v{Dd+14}, v{Dd+15}")
    w(f"  buffer_store_dwordx2 {vr(Dd+20,2)}, v{vOUT}, s[{SO}:{SO+3}], 0 offen")
    w(f"  buffer_store_dwordx2 {vr(Dd+22,2)}, v{vOUT}, s[{SO}:{SO+3}], 0 offen offset:32")
    w("  s_nop 7")
    w(f"  v_cvt_pk_bf16_f32 v{Dd+24}, v{Dd+16}, v{Dd+17}")
    w(f"  v_cvt_pk_bf16_f32 v{Dd+25}, v{Dd+18}, v{Dd+19}")
    w(f"  buffer_store_dwordx2 {vr(Dd+24,2)}, v{vOUT}, s[{SO}:{SO+3}], 0 offen offset:64")
    if stamps:
        w("  s_waitcnt vmcnt(0)")
        stamp(5)
        w("  s_waitcnt lgkmcnt(0)")
        w(f"  s_mul_i32 s92, s3, {NW}")
        w(f"  s_add_u32 s92, s92, s{sW}")
        w("  s_lshl_b32 s92, s92, 5")
        w("  s_add_u32 s88, s62, s92")
        w("  s_addc_u32 s89, s63, 0")
        w("  s_and_b32 s89, s89, 0xffff")
        w("  s_mov_b32 s90, 32")
        w("  s_mov_b32 s91, 0x00020000")
        for i in range(6):
            w(f"  v_mov_b32 v{ACC+i}, s{64+2*i}")
        w(f"  v_mov_b32 v{ACC+8}, 0")
        w("  s_mov_b64 exec, 1")
        w(f"  buffer_store_dwordx4 {vr(ACC)}, v{ACC+8}, s[88:91], 0 offen")
        w(f"  buffer_store_dwordx2 {vr(ACC+4,2)}, v{ACC+8}, s[88:91], 0 offen offset:16")
    w("L_end:")
    w("  s_endpgm")
    w('.section .rodata,"a"')
    w(".p2align 6")
    w(f".amdhsa_kernel {KNAME}")
    w(f"  .amdhsa_next_free_vgpr {NV}")
    w("  .amdhsa_next_free_sgpr 102")
    w(f"  .amdhsa_accum_offset {(NV+3)//4*4}")
    w("  .amdhsa_group_segment_fixed_size 0")
    w("  .amdhsa_kernarg_size 64")
    w("  .amdhsa_user_sgpr_count 2")
    w("  .amdhsa_user_sgpr_kernarg_segment_ptr 1")
    w("  .amdhsa_system_sgpr_workgroup_id_x 1")
    w(".end_amdhsa_kernel")
    return "\n".join(o) + "\n"


if __name__ == "__main__":
    out = sys.argv[1] if len(sys.argv) > 1 else "standalone__low_rank_proj_linformer__sampling.s"
    kw = {}
    for a in sys.argv[2:]:
        k_, v_ = a.split("=")
        try:
            kw[k_] = int(v_)
        except ValueError:
            kw[k_] = v_.replace("+", " ")
    open(out, "w").write(gen(**kw))
```

```python
import sys

KNAME = "standalone__low_rank_proj_linformer__sampling_kernel"

HEADER = """; Kernarg layout for this problem (64 bytes, ptrs only, base s[0:1]):
"""


def gen(nt=1, stamps=0, stag=1, minlds=84000, hmap=0, fc=1, D=6, maxtry=4096, csleep=4, ssleep=1, cst=1, cld=1, stpol='sc1', ldpol='sc1', gstride=1280, pubstep=2, full=1, lstride=128, S1=16, S2=8, SW=96, phm=5, tlbpf=1, lastbody=1, GS=8, S3=0, SW3=116):
    NW = 4
    o = []
    w = o.append
    NT = " nt" if nt else ""

    def stamp(i):
        if stamps:
            w(f"  s_memrealtime s[{64+2*i}:{65+2*i}]")

    HEADB = 4096 * 384
    BLKB = 64 * 384
    NBLK = 64
    JS = 26 * 16
    RS = 8 * JS
    PS = 2 * RS
    NPART = 2 * NW
    KPB = NPART * PS
    KPROW = 400
    PFR = KPB + 8 * KPROW
    CTR = PFR + 512
    LDS = CTR + 32
    LDS = max(LDS, minlds)
    LDS = (LDS + 255) // 256 * 256
    WSOFF = 1 << 20

    vS = [1, 2, 3]
    vA = 4
    vWP, vWQ, vRD = 5, 6, 7
    vKW, vKR, vOUT, vRD2 = 8, 9, 10, 11
    ARAW, ALO, AHI = 12, 16, 20
    T = 24
    QF = 56
    vCL, vCT, vPF, vOne = 80, 81, 82, 83
    ACC = 84
    RING = 148
    vLIM = RING + 96
    NV = RING + 100

    def accP(j): return ACC + 4 * j
    def accQ(j): return ACC + 32 + 4 * j
    def vr(b, n=4): return f"v[{b}:{b+n-1}]"

    SN, SA, SQ, SO = 16, 20, 24, 28
    sKb, sVb = 32, 34
    sW, sCur, sOffN, sOffA = 36, 37, 38, 39
    sSelLo, sSelHi = 40, 41
    sMLo, sMHi = 42, 44
    sTmp, sTmp2 = 46, 47
    sExQ = 48
    sG01, sG23 = 50, 52
    sC0, sC1 = 54, 55
    sNxt, sDump, sPi, sStag = 56, 57, 58, 59
    SD = 60
    sLim, sTry, sOff, sSlot, sLast = 96, 97, 98, 99, 100
    sWG = 3

    nthreads = (NW + (1 if fc else 0)) * 64
    w(HEADER.rstrip("\n"))
    w(f"; @launch grid=(256,1,1) block=({nthreads},1,1) lds={LDS}")
    w('.amdgcn_target "amdgcn-amd-amdhsa--gfx950"')
    w(".text")
    w(f".globl {KNAME}")
    w(".p2align 8")
    w(f".type {KNAME},@function")
    w(f"{KNAME}:")
    w("  s_cmp_ge_u32 s2, 256")
    w("  s_cbranch_scc1 L_end")
    stamp(0)
    w("  s_mov_b32 s3, s2")
    if hmap == 1:
        w("  s_lshr_b32 s60, s3, 3")
        w("  s_and_b32 s61, s3, 7")
        w("  s_lshl_b32 s61, s61, 5")
        w("  s_add_u32 s2, s60, s61")
    w("  s_load_dwordx8 s[4:11], s[0:1], 0")
    w("  s_load_dwordx4 s[12:15], s[0:1], 32")
    w("  s_load_dwordx2 s[62:63], s[0:1], 56")
    L, WV, G, C, CC, HF, G16, C16, G3K = T, T+1, T+2, T+3, T+4, T+5, T+6, T+7, T+8
    w(f"  v_and_b32 v{L}, 63, v0")
    w(f"  v_lshrrev_b32 v{WV}, 6, v0")
    w(f"  v_lshrrev_b32 v{G}, 4, v{L}")
    w(f"  v_and_b32 v{C}, 15, v{L}")
    w(f"  v_readfirstlane_b32 s{sW}, v{WV}")
    w(f"  v_mul_u32_u24 v{G3K}, 3072, v{G}")
    w(f"  v_lshlrev_b32 v{C16}, 4, v{C}")
    w(f"  v_mov_b32 v{vCT}, {CTR}")
    w(f"  v_mov_b32 v{vOne}, 1")
    if fc:
        w(f"  s_cmp_eq_u32 s{sW}, {NW}")
        w("  s_cbranch_scc1 L_ctrl")
    w(f"  v_add_u32 v{vS[0]}, v{G3K}, v{C16}")
    w(f"  v_add_u32 v{vS[2]}, {12288+128}, v{vS[0]}")
    w(f"  v_and_b32 v{CC}, 7, v{C}")
    w(f"  v_lshrrev_b32 v{HF}, 3, v{C}")
    w(f"  v_lshlrev_b32 v{T+9}, 4, v{CC}")
    w(f"  v_add_u32 v{T+9}, v{G3K}, v{T+9}")
    w(f"  v_mul_u32_u24 v{T+10}, {12288-256}, v{HF}")
    w(f"  v_add_u32 v{T+9}, v{T+9}, v{T+10}")
    w(f"  v_add_u32 v{vS[1]}, 256, v{T+9}")
    w(f"  v_lshlrev_b32 v{T+9}, 13, v{CC}")
    w(f"  v_lshlrev_b32 v{T+10}, 6, v{HF}")
    w(f"  v_lshlrev_b32 v{G16}, 4, v{G}")
    w(f"  v_add3_u32 v{vA}, v{T+9}, v{T+10}, v{G16}")
    w(f"  s_mul_i32 s{sTmp}, s2, {HEADB}")
    w(f"  s_mul_i32 s{sStag}, s2, {stag}")
    w(f"  s_add_u32 s{sTmp2}, s{sStag}, s{sW}")
    w(f"  s_and_b32 s{sTmp2}, s{sTmp2}, {NBLK-1}")
    w(f"  s_mul_i32 s{sOffN}, s{sTmp2}, {BLKB}")
    w(f"  s_lshl_b32 s{sOffA}, s{sTmp2}, 7")
    w(f"  s_mov_b32 s{SN+2}, {HEADB}")
    w(f"  s_mov_b32 s{SN+3}, 0x00020000")
    w(f"  s_mov_b32 s{SA+2}, 65536")
    w(f"  s_mov_b32 s{SA+3}, 0x00020000")
    w("  s_waitcnt lgkmcnt(0)")
    w(f"  s_add_u32 s{sKb}, s6, s{sTmp}")
    w(f"  s_addc_u32 s{sKb+1}, s7, 0")
    w(f"  s_and_b32 s{sKb+1}, s{sKb+1}, 0xffff")
    w(f"  s_mov_b32 s{SN}, s{sKb}")
    w(f"  s_mov_b32 s{SN+1}, s{sKb+1}")
    w(f"  s_mov_b32 s{SA}, s10")
    w(f"  s_and_b32 s{SA+1}, s11, 0xffff")

    def loads(unit_set, ring_slot, rows=range(8)):
        for i in rows:
            w(f"  buffer_load_dwordx4 {vr(RING + 32*ring_slot + 4*i)}, v{vS[unit_set]}, s[{SN}:{SN+3}], s{sOffN} offen offset:{i*384}{NT}")

    def loadA():
        w(f"  buffer_load_dwordx4 {vr(ARAW)}, v{vA}, s[{SA}:{SA+3}], s{sOffA} offen")

    UNITS = [(1, ARAW, accQ), (0, ALO, accP), (2, AHI, accP)]

    loads(UNITS[0][0], 0)
    loadA()
    loads(UNITS[1][0], 1)
    loads(UNITS[2][0], 2)
    stamp(1)
    w(f"  s_add_u32 s{sVb}, s8, s{sTmp}")
    w(f"  s_addc_u32 s{sVb+1}, s9, 0")
    w(f"  s_and_b32 s{sVb+1}, s{sVb+1}, 0xffff")
    w(f"  s_and_b32 s11, s11, 0xffff")
    w(f"  s_and_b32 s13, s13, 0xffff")
    w(f"  s_mul_i32 s{sTmp2}, s2, 6144")
    w(f"  s_add_u32 s{SQ}, s4, s{sTmp2}")
    w(f"  s_addc_u32 s{SQ+1}, s5, 0")
    w(f"  s_and_b32 s{SQ+1}, s{SQ+1}, 0xffff")
    w(f"  s_mov_b32 s{SQ+2}, 6144")
    w(f"  s_mov_b32 s{SQ+3}, 0x00020000")
    w(f"  s_add_u32 s{SO}, s14, s{sTmp2}")
    w(f"  s_addc_u32 s{SO+1}, s15, 0")
    w(f"  s_and_b32 s{SO+1}, s{SO+1}, 0xffff")
    w(f"  s_mov_b32 s{SO+2}, 6144")
    w(f"  s_mov_b32 s{SO+3}, 0x00020000")
    w(f"  s_mov_b32 s{sSelLo}, 0x05040100")
    w(f"  s_mov_b32 s{sSelHi}, 0x07060302")
    w(f"  s_mov_b32 s{sMLo}, 0x00ff00ff")
    w(f"  s_mov_b32 s{sMLo+1}, 0x00ff00ff")
    w(f"  s_mov_b32 s{sMHi}, 0xff00ff00")
    w(f"  s_mov_b32 s{sMHi+1}, 0xff00ff00")
    w(f"  s_mov_b32 s{sExQ}, 0x00ff00ff")
    w(f"  s_mov_b32 s{sExQ+1}, 0xff00ff00")
    w(f"  s_mov_b32 s{sG01}, -1")
    w(f"  s_mov_b32 s{sG01+1}, 0")
    w(f"  s_mov_b32 s{sG23}, 0")
    w(f"  s_mov_b32 s{sG23+1}, -1")
    w(f"  s_mov_b32 s{sCur}, s{sW}")
    w(f"  s_mov_b32 s{sDump}, 0")
    w(f"  s_mov_b32 s{sOff}, 0")
    QO = T + 11
    w(f"  v_mul_u32_u24 v{QO}, 384, v{C}")
    w(f"  v_add_u32 v{QO}, v{QO}, v{G16}")
    for t in range(6):
        w(f"  buffer_load_dwordx4 {vr(QF+4*t)}, v{QO}, s[{SQ}:{SQ+3}], 0 offen offset:{t*64}")
    PART, RH, X1, X2, X3 = T+12, T+13, T+14, T+15, T+16
    w(f"  v_lshrrev_b32 v{PART}, 1, v{G}")
    w(f"  v_and_b32 v{RH}, 1, v{G}")
    w(f"  v_lshlrev_b32 v{X1}, 1, v{WV}")
    w(f"  v_add_u32 v{X1}, v{X1}, v{PART}")
    w(f"  v_mul_u32_u24 v{X1}, {PS}, v{X1}")
    w(f"  v_mul_u32_u24 v{X2}, {RS}, v{RH}")
    w(f"  v_add_u32 v{X1}, v{X1}, v{X2}")
    w(f"  v_lshlrev_b32 v{X3}, 7, v{PART}")
    w(f"  v_add3_u32 v{vWP}, v{X1}, v{X3}, v{C16}")
    w(f"  v_mul_u32_u24 v{X3}, 384, v{PART}")
    w(f"  v_add_u32 v{X1}, v{X1}, v{C16}")
    w(f"  v_add_u32 v{X1}, 256, v{X1}")
    w(f"  v_sub_u32 v{vWQ}, v{X1}, v{X3}")
    w(f"  v_lshlrev_b32 v{X1}, 1, v{PART}")
    w(f"  v_add_u32 v{X1}, v{X1}, v{HF}")
    w(f"  v_lshlrev_b32 v{X1}, 4, v{X1}")
    w(f"  v_mul_u32_u24 v{X3}, {JS}, v{CC}")
    w(f"  v_add3_u32 v{vRD}, v{X1}, v{X3}, v{X2}")
    w(f"  v_lshlrev_b32 v{X1}, 4, v{PART}")
    w(f"  v_add_u32 v{X1}, v{X1}, v{C}")
    w(f"  v_lshlrev_b32 v{X1}, 1, v{X1}")
    w(f"  v_mul_u32_u24 v{X3}, {4*KPROW}, v{RH}")
    w(f"  v_add_u32 v{X3}, {KPB}, v{X3}")
    w(f"  v_add_u32 v{vKW}, v{X1}, v{X3}")
    w(f"  v_mul_u32_u24 v{X3}, {KPROW}, v{CC}")
    w(f"  v_add_u32 v{X3}, {KPB}, v{X3}")
    w(f"  v_add_u32 v{vKR}, v{X3}, v{G16}")
    w(f"  v_mul_u32_u24 v{X1}, 384, v{C}")
    w(f"  v_mul_u32_u24 v{X2}, 96, v{WV}")
    w(f"  v_lshlrev_b32 v{X3}, 3, v{G}")
    w(f"  v_add3_u32 v{vOUT}, v{X1}, v{X2}, v{X3}")
    w(f"  v_mul_u32_u24 v{X1}, {RS}, v{RH}")
    w(f"  v_mul_u32_u24 v{X2}, {JS}, v{CC}")
    w(f"  v_lshlrev_b32 v{X3}, 4, v{HF}")
    w(f"  v_add3_u32 v{X1}, v{X1}, v{X2}, v{X3}")
    w(f"  v_mul_u32_u24 v{X2}, {4*PS}, v{PART}")
    w(f"  v_add_u32 v{X1}, v{X1}, v{X2}")
    w(f"  v_add_u32 v{vRD2}, 64, v{X1}")
    w(f"  v_lshlrev_b32 v{X1}, 3, v{L}")
    w(f"  v_add_u32 v{vPF}, {PFR}, v{X1}")

    def init_counters():
        w(f"  v_mov_b32 v{X1}, {NW}")
        w(f"  v_mov_b32 v{X2}, 0")
        w(f"  v_mov_b32 v{X3}, 0")
        w(f"  v_mov_b32 v{X3+1}, 255")
        w(f"  v_mov_b32 v{X3+2}, 0")
        w(f"  v_mov_b32 v{X3+3}, 0")
        w(f"  ds_write_b128 v{vCT}, {vr(X1)}")
        w(f"  ds_write_b64 v{vCT}, {vr(X3+2,2)} offset:16")
        w("  s_waitcnt lgkmcnt(0)")

    if not fc:
        w(f"  s_cmp_lg_u32 s{sW}, 0")
        w("  s_cbranch_scc1 L_noinit")
        init_counters()
        w("L_noinit:")
    for r in range(64):
        w(f"  v_mov_b32 v{ACC+r}, 0")
    w("  s_barrier")
    if stamps:
        w("  s_waitcnt vmcnt(22)")
        stamp(2)

    def body_last():
        for u, (st, areg, accf) in enumerate(UNITS):
            if u == 1:
                w("  s_waitcnt vmcnt(8)")
            if u == 2:
                w("  s_waitcnt vmcnt(0)")
            R = RING + 32 * u
            for dw in range(4):
                for m in range(4):
                    x = R + 4 * (2 * m) + dw
                    y = R + 4 * (2 * m + 1) + dw
                    w(f"  v_perm_b32 v{T + 4*(2*dw) + m}, v{y}, v{x}, s{sSelLo}")
                    w(f"  v_perm_b32 v{T + 4*(2*dw+1) + m}, v{y}, v{x}, s{sSelHi}")
                if dw >= 1:
                    for j in (2*(dw-1), 2*(dw-1)+1):
                        w(f"  v_mfma_f32_16x16x32_bf16 {vr(accf(j))}, {vr(areg)}, {vr(T+4*j)}, {vr(accf(j))}")
            w("  s_nop 1")
            for j in (6, 7):
                w(f"  v_mfma_f32_16x16x32_bf16 {vr(accf(j))}, {vr(areg)}, {vr(T+4*j)}, {vr(accf(j))}")

    def body(first=False):
        extra = 6 if first else 0
        tag = "f" if first else "l"
        w("  s_mov_b64 exec, 1")
        w(f"  ds_add_rtn_u32 v{vCL}, v{vCT}, v{vOne}")
        w("  s_mov_b64 exec, -1")
        if fc:
            w(f"  ds_read_b32 v{vLIM}, v{vCT} offset:12")
        for u, (st, areg, accf) in enumerate(UNITS):
            n_out = (16 if u == 0 else 17) + extra
            w(f"  s_waitcnt vmcnt({n_out})")
            if u == 0:
                w("  s_waitcnt lgkmcnt(0)")
                w(f"  v_readfirstlane_b32 s{sNxt}, v{vCL}")
                if fc:
                    w(f"  v_readfirstlane_b32 s{sLim}, v{vLIM}")
                for e in range(4):
                    w(f"  v_cndmask_b32 v{ALO+e}, 0, v{ARAW+e}, s[{sMLo}:{sMLo+1}]")
                    w(f"  v_cndmask_b32 v{AHI+e}, 0, v{ARAW+e}, s[{sMHi}:{sMHi+1}]")
                if lastbody and not first:
                    w(f"  s_cmp_ge_u32 s{sNxt}, {2*NBLK}")
                    w("  s_cbranch_scc1 L_last")
                if fc:
                    w(f"  s_cmp_gt_u32 s{sNxt}, s{sLim}")
                    w(f"  s_cbranch_scc1 L_stall_{tag}")
                    w(f"L_cont_{tag}:")
                w(f"  s_cmp_ge_u32 s{sNxt}, {NBLK}")
                w(f"  s_cselect_b32 s{SN}, s{sVb}, s{sKb}")
                w(f"  s_cselect_b32 s{SN+1}, s{sVb+1}, s{sKb+1}")
                w(f"  s_cselect_b32 s{SA}, s12, s10")
                w(f"  s_cselect_b32 s{SA+1}, s13, s11")
                w(f"  s_cmp_ge_u32 s{sNxt}, {2*NBLK}")
                w(f"  s_cselect_b32 s{SN+2}, 0, {HEADB}")
                w(f"  s_cselect_b32 s{SA+2}, 0, 65536")
                w(f"  s_add_u32 s{sTmp}, s{sNxt}, s{sStag}")
                w(f"  s_and_b32 s{sTmp}, s{sTmp}, {NBLK-1}")
                w(f"  s_mul_i32 s{sOffN}, s{sTmp}, {BLKB}")
                w(f"  s_lshl_b32 s{sOffA}, s{sTmp}, 7")
            R = RING + 32 * u
            for m in range(4):
                for dw in range(4):
                    x = R + 4 * (2 * m) + dw
                    y = R + 4 * (2 * m + 1) + dw
                    w(f"  v_perm_b32 v{T + 4*(2*dw) + m}, v{y}, v{x}, s{sSelLo}")
                    w(f"  v_perm_b32 v{T + 4*(2*dw+1) + m}, v{y}, v{x}, s{sSelHi}")
                loads(st, u, rows=(2 * m, 2 * m + 1))
            for j in range(8):
                w(f"  v_mfma_f32_16x16x32_bf16 {vr(accf(j))}, {vr(areg)}, {vr(T+4*j)}, {vr(accf(j))}")
            if u == 0:
                loadA()

    def after_body():
        w(f"  s_mov_b32 s{sCur}, s{sNxt}")
        w(f"  s_cmp_lt_u32 s{sCur}, {NBLK}")
        w("  s_cbranch_scc1 L_loop")
        w(f"  s_cmp_eq_u32 s{sDump}, 0")
        w("  s_cbranch_scc1 L_dumpK")

    body(first=True)
    after_body()
    w("  s_branch L_chk")
    w("L_loop:")
    body()
    after_body()
    w("L_chk:")
    w(f"  s_cmp_lt_u32 s{sCur}, {2*NBLK}")
    w("  s_cbranch_scc1 L_loop")
    w("  s_branch L_tail")

    def dump():
        w("  s_nop 7")
        w("  s_nop 1")
        for j in range(8):
            w(f"  ds_write_b128 v{vWP}, {vr(accP(j))} offset:{j*JS}")
        w(f"  s_mov_b64 exec, s[{sExQ}:{sExQ+1}]")
        for j in range(8):
            w(f"  ds_write_b128 v{vWQ}, {vr(accQ(j))} offset:{j*JS}")
        w("  s_mov_b64 exec, -1")

    if fc:
        for tag in ("f", "l"):
            w(f"L_stall_{tag}:")
            w(f"  s_cmp_ge_u32 s{sNxt}, {2*NBLK}")
            w(f"  s_cbranch_scc1 L_cont_{tag}")
            w(f"  s_cmp_lg_u32 s{sOff}, 0")
            w(f"  s_cbranch_scc1 L_cont_{tag}")
            w(f"  s_mov_b32 s{sTry}, 0")
            w(f"L_st_{tag}:")
            w(f"  s_sleep {ssleep}")
            w(f"  ds_read_b32 v{vLIM}, v{vCT} offset:12")
            w("  s_waitcnt lgkmcnt(0)")
            w(f"  v_readfirstlane_b32 s{sLim}, v{vLIM}")
            w("  s_nop 3")
            w(f"  s_cmp_le_u32 s{sNxt}, s{sLim}")
            w(f"  s_cbranch_scc1 L_cont_{tag}")
            w(f"  s_add_u32 s{sTry}, s{sTry}, 1")
            w(f"  s_cmp_lt_u32 s{sTry}, {maxtry}")
            w(f"  s_cbranch_scc1 L_st_{tag}")
            w(f"  s_mov_b32 s{sOff}, 1")
            w(f"  s_branch L_cont_{tag}")

        w("L_ctrl:")
        init_counters()
        w("  s_setprio 3")
        if tlbpf:
            w(f"  s_mul_i32 s{sTmp}, s2, {HEADB}")
            w(f"  s_add_u32 s{SN}, s6, s{sTmp}")
            w(f"  s_addc_u32 s{SN+1}, s7, 0")
            w(f"  s_and_b32 s{SN+1}, s{SN+1}, 0xffff")
            w(f"  s_mov_b32 s{SN+2}, {HEADB}")
            w(f"  s_mov_b32 s{SN+3}, 0x00020000")
            w(f"  s_add_u32 s{SA}, s8, s{sTmp}")
            w(f"  s_addc_u32 s{SA+1}, s9, 0")
            w(f"  s_and_b32 s{SA+1}, s{SA+1}, 0xffff")
            w(f"  s_mov_b32 s{SA+2}, {HEADB}")
            w(f"  s_mov_b32 s{SA+3}, 0x00020000")
            w(f"  v_lshlrev_b32 v12, 18, v{L}")
            w(f"  buffer_load_dword v13, v12, s[{SA}:{SA+3}], 0 offen nt")
            w(f"  buffer_load_dword v14, v12, s[{SN}:{SN+3}], 0 offen nt")
        gsh = GS.bit_length() - 1
        w(f"  s_lshr_b32 s{sTry}, s{sWG}, {gsh}")
        w(f"  s_mul_i32 s{sTry}, s{sTry}, {GS*lstride+256}")
        w(f"  s_add_u32 s{sTry}, s{sTry}, {WSOFF}")
        w(f"  s_add_u32 s{SD}, s62, s{sTry}")
        w(f"  s_addc_u32 s{SD+1}, s63, 0")
        w(f"  s_and_b32 s{SD+1}, s{SD+1}, 0xffff")
        if not full:
            w(f"  s_mov_b32 s{SD+2}, 32")
            w(f"  s_mov_b32 s{SD+3}, 0x00020000")
            w(f"  s_and_b32 s{sSlot}, s{sWG}, 7")
            w(f"  s_lshl_b32 s{sSlot}, s{sSlot}, 2")
            w(f"  v_and_b32 v1, 7, v{L}")
            w("  v_lshlrev_b32 v1, 2, v1")
        else:
            w(f"  s_mov_b32 s{SD+2}, {GS*lstride}")
            w(f"  s_mov_b32 s{SD+3}, 0x00020000")
            w(f"  s_and_b32 s{sSlot}, s{sWG}, {GS-1}")
            w(f"  s_mul_i32 s{sSlot}, s{sSlot}, {lstride}")
            w(f"  v_and_b32 v1, 7, v{L}")
            w(f"  v_lshlrev_b32 v6, 4, v1")
            w(f"  v_and_b32 v1, {GS-1}, v{L}")
            w(f"  v_mul_u32_u24 v1, {lstride}, v1")
        w(f"  s_lshr_b32 s{sTmp}, s{sWG}, {gsh}")
        w(f"  s_mul_i32 s{sTmp}, s{sTmp}, {phm}")
        w(f"  s_and_b32 s{sTmp}, s{sTmp}, {S1-1}")
        w(f"  s_sub_u32 s{sLast}, {S1}, s{sTmp}")
        w(f"  v_mov_b32 v8, s{sLast}")
        w(f"  v_mov_b32 v9, s{sLast}")
        w(f"  v_mov_b32 v10, s{sLast}")
        w(f"  v_mov_b32 v11, s{sLast}")
        w(f"  s_mov_b64 exec, 255")
        if cst:
            w(f"  buffer_store_dwordx4 v[8:11], v6, s[{SD}:{SD+3}], s{sSlot} offen {stpol}")
        w("  s_mov_b64 exec, -1")
        w("  s_barrier")
        w("L_cl:")
        w(f"  ds_read_b32 v2, v{vCT}")
        w("  s_waitcnt lgkmcnt(0)")
        w(f"  v_readfirstlane_b32 s{sNxt}, v2")
        w("  s_nop 3")
        w(f"  s_cmp_ge_u32 s{sNxt}, {2*NBLK}")
        w("  s_cbranch_scc1 L_cfin")
        w(f"  s_cmp_lt_u32 s{sNxt}, s{sLast}")
        w("  s_cbranch_scc1 L_cnopub")
        w(f"  s_cmp_ge_u32 s{sLast}, {SW}")
        w(f"  s_cselect_b32 s{sTmp}, {S2}, {S1}")
        if S3:
            w(f"  s_cmp_ge_u32 s{sLast}, {SW3}")
            w(f"  s_cselect_b32 s{sTmp}, {S3}, s{sTmp}")
        w(f"  s_add_u32 s{sLast}, s{sLast}, s{sTmp}")
        w("L_cpub:")
        w(f"  v_mov_b32 v8, s{sLast}")
        w(f"  v_mov_b32 v9, s{sLast}")
        w(f"  v_mov_b32 v10, s{sLast}")
        w(f"  v_mov_b32 v11, s{sLast}")
        w(f"  s_mov_b64 exec, 255")
        if cst:
            w(f"  buffer_store_dwordx4 v[8:11], v6, s[{SD}:{SD+3}], s{sSlot} offen {stpol}")
        w("  s_mov_b64 exec, -1")
        w("L_cnopub:")
        w(f"  buffer_load_dword v4, v1, s[{SD}:{SD+3}], 0 offen {ldpol}")
        w("  s_waitcnt vmcnt(0)")
        if GS > 8:
            for sh in (1, 2, 4, 8):
                w("  s_nop 1")
                w(f"  v_min_u32_dpp v4, v4, v4 row_ror:{sh} row_mask:0xf bank_mask:0xf")
            w("  s_nop 1")
            nrow = GS // 16
            for i in range(nrow):
                w(f"  v_readlane_b32 s{64+i}, v4, {16*i}")
            w("  s_nop 3")
            for i in range(1, nrow):
                w(f"  s_min_u32 s64, s64, s{64+i}")
        else:
            for i in range(8):
                w(f"  v_readlane_b32 s{64+i}, v4, {i}")
            w("  s_nop 3")
            for i in range(1, 8):
                w(f"  s_min_u32 s64, s64, s{64+i}")
        w(f"  s_min_u32 s64, s64, 250")
        w(f"  s_add_u32 s64, s64, {D}")
        w("  v_mov_b32 v5, s64")
        w("  s_mov_b64 exec, 1")
        w(f"  ds_write_b32 v{vCT}, v5 offset:12")
        w("  s_mov_b64 exec, -1")
        if csleep:
            w(f"  s_sleep {csleep}")
        w("  s_branch L_cl")
        w("L_cfin:")
        w("  v_mov_b32 v8, 255")
        w("  v_mov_b32 v9, 255")
        w("  v_mov_b32 v10, 255")
        w("  v_mov_b32 v11, 255")
        w(f"  s_mov_b64 exec, 255")
        if cst:
            w(f"  buffer_store_dwordx4 v[8:11], v6, s[{SD}:{SD+3}], s{sSlot} offen {stpol}")
        w("L_cexit:")
        w("  v_mov_b32 v5, 255")
        w("  s_mov_b64 exec, 1")
        w(f"  ds_write_b32 v{vCT}, v5 offset:12")
        w("  s_endpgm")

    def reduce_partials(dst, va):
        for p in range(8):
            w(f"  ds_read_b128 {vr(T+4*p)}, v{va} offset:{p*PS}")
        for p in range(8):
            w(f"  s_waitcnt lgkmcnt({7-p})")
            for e in range(4):
                if p == 0:
                    w(f"  v_mov_b32 v{dst+e}, v{T+4*p+e}")
                else:
                    w(f"  v_add_f32 v{dst+e}, v{dst+e}, v{T+4*p+e}")

    w("L_dumpK:")
    stamp(3)
    w(f"  s_mov_b32 s{sDump}, 1")
    dump()
    w("  s_mov_b64 exec, 1")
    w(f"  ds_add_rtn_u32 v{vCL}, v{vCT}, v{vOne} offset:4")
    w("  s_mov_b64 exec, -1")
    for r in range(64):
        w(f"  v_mov_b32 v{ACC+r}, 0")
    w("  s_waitcnt lgkmcnt(0)")
    w(f"  v_readfirstlane_b32 s{sTmp}, v{vCL}")
    w("  s_nop 3")
    w(f"  s_cmp_lg_u32 s{sTmp}, {NW-1}")
    w("  s_cbranch_scc1 L_chk")
    SUM = ALO
    VA, VK = AHI, AHI+2
    w(f"  v_mov_b32 v{VA}, v{vRD}")
    w(f"  v_mov_b32 v{VK}, v{vKW}")
    w(f"  s_mov_b32 s{sPi}, 0")
    w("L_kred:")
    reduce_partials(SUM, VA)
    w(f"  v_cvt_pk_bf16_f32 v{T}, v{SUM}, v{SUM+1}")
    w(f"  v_cvt_pk_bf16_f32 v{T+1}, v{SUM+2}, v{SUM+3}")
    w(f"  ds_write_b16 v{VK}, v{T} offset:0")
    w(f"  ds_write_b16_d16_hi v{VK}, v{T} offset:{KPROW}")
    w(f"  ds_write_b16 v{VK}, v{T+1} offset:{2*KPROW}")
    w(f"  ds_write_b16_d16_hi v{VK}, v{T+1} offset:{3*KPROW}")
    w(f"  v_add_u32 v{VA}, 64, v{VA}")
    w(f"  v_add_u32 v{VK}, 64, v{VK}")
    w(f"  s_add_u32 s{sPi}, s{sPi}, 1")
    w(f"  s_cmp_lt_u32 s{sPi}, 6")
    w("  s_waitcnt lgkmcnt(0)")
    w("  s_cbranch_scc1 L_kred")
    S = T + 24
    for e in range(4):
        w(f"  v_mov_b32 v{S+e}, 0")
    for t in range(6):
        w(f"  ds_read_b128 {vr(T+4*t)}, v{vKR} offset:{t*64}")
    w("  s_waitcnt vmcnt(25)")
    for t in range(6):
        w(f"  s_waitcnt lgkmcnt({5-t})")
        w(f"  v_mfma_f32_16x16x32_bf16 {vr(S)}, {vr(T+4*t)}, {vr(QF+4*t)}, {vr(S)}")
    w("  s_nop 7")
    w("  s_nop 1")
    w(f"  s_mov_b32 s{sC0}, 0x3d93cd3a")
    w(f"  s_mov_b32 s{sC1}, 0x3fb8aa3b")
    X = T
    for rep in range(2):
        w(f"  v_cvt_pk_bf16_f32 v{X}, v{S}, v{S+1}")
        w(f"  v_cvt_pk_bf16_f32 v{X+1}, v{S+2}, v{S+3}")
        w(f"  v_lshlrev_b32 v{S}, 16, v{X}")
        w(f"  v_and_b32 v{S+1}, 0xffff0000, v{X}")
        w(f"  v_lshlrev_b32 v{S+2}, 16, v{X+1}")
        w(f"  v_and_b32 v{S+3}, 0xffff0000, v{X+1}")
        if rep == 0:
            for e in range(4):
                w(f"  v_mul_f32 v{S+e}, s{sC0}, v{S+e}")
    w(f"  v_max_f32 v{X}, v{S}, v{S+1}")
    w(f"  v_max3_f32 v{X}, v{X}, v{S+2}, v{S+3}")
    w(f"  ds_swizzle_b32 v{X+1}, v{X} offset:0x401F")
    w("  s_waitcnt lgkmcnt(0)")
    w(f"  v_max_f32 v{X}, v{X}, v{X+1}")
    for e in range(4):
        w(f"  v_sub_f32 v{S+e}, v{S+e}, v{X}")
    for e in range(4):
        w(f"  v_mul_f32 v{S+e}, s{sC1}, v{S+e}")
    for e in range(4):
        w(f"  v_exp_f32 v{S+e}, v{S+e}")
    w("  s_nop 0")
    w(f"  v_add_f32 v{X}, v{S}, v{S+1}")
    w(f"  v_add_f32 v{X+1}, v{S+2}, v{S+3}")
    w(f"  v_add_f32 v{X}, v{X}, v{X+1}")
    w(f"  ds_swizzle_b32 v{X+1}, v{X} offset:0x401F")
    w("  s_waitcnt lgkmcnt(0)")
    w(f"  v_add_f32 v{X}, v{X}, v{X+1}")
    w(f"  v_rcp_f32 v{X}, v{X}")
    w("  s_nop 0")
    for e in range(4):
        w(f"  v_mul_f32 v{S+e}, v{S+e}, v{X}")
    w(f"  v_cvt_pk_bf16_f32 v{X}, v{S}, v{S+1}")
    w(f"  v_cvt_pk_bf16_f32 v{X+1}, v{S+2}, v{S+3}")
    w(f"  ds_write_b64 v{vPF}, {vr(X,2)}")
    w("  s_mov_b64 exec, 1")
    w(f"  ds_write_b32 v{vCT}, v{vOne} offset:8")
    w("  s_mov_b64 exec, -1")
    w("  s_waitcnt lgkmcnt(0)")
    w("  s_branch L_chk")

    if lastbody:
        w("L_last:")
        body_last()
        w(f"  s_mov_b32 s{sCur}, s{sNxt}")
        w(f"  s_cmp_eq_u32 s{sDump}, 0")
        w("  s_cbranch_scc1 L_dumpK")
    w("L_tail:")
    stamp(4)
    w("L_spin:")
    w(f"  ds_read_b32 v{vCL}, v{vCT} offset:8")
    w("  s_waitcnt lgkmcnt(0)")
    w(f"  v_readfirstlane_b32 s{sTmp}, v{vCL}")
    w("  s_nop 3")
    w(f"  s_cmp_lg_u32 s{sTmp}, 0")
    w("  s_cbranch_scc1 L_go")
    w("  s_sleep 1")
    w("  s_branch L_spin")
    w("L_go:")
    dump()
    PB = QF
    w(f"  ds_read_b64 {vr(PB,2)}, v{vPF}")
    w("  s_mov_b64 exec, 1")
    w(f"  ds_add_u32 v{vCT}, v{vOne} offset:16")
    w("  s_mov_b64 exec, -1")
    w(f"  s_mul_i32 s{sTmp}, s{sW}, 96")
    w(f"  v_add_u32 v{vRD}, s{sTmp}, v{vRD}")
    w(f"  v_add_u32 v{vRD2}, s{sTmp}, v{vRD2}")
    w("L_vspin:")
    w(f"  ds_read_b32 v{vCL}, v{vCT} offset:16")
    w("  s_waitcnt lgkmcnt(0)")
    w(f"  v_readfirstlane_b32 s{sTmp}, v{vCL}")
    w("  s_nop 3")
    w(f"  s_cmp_lt_u32 s{sTmp}, {NW}")
    w("  s_cbranch_scc1 L_vspin")
    BA = ACC
    BB = ACC + 32
    for p in range(8):
        w(f"  ds_read_b128 {vr(BA+4*p)}, v{vRD} offset:{p*PS}")
    for p in range(4):
        w(f"  ds_read_b128 {vr(BB+4*p)}, v{vRD2} offset:{p*PS}")
    w(f"  v_cndmask_b32 v{PB+2}, 0, v{PB}, s[{sG01}:{sG01+1}]")
    w(f"  v_cndmask_b32 v{PB+3}, 0, v{PB+1}, s[{sG01}:{sG01+1}]")
    w(f"  v_cndmask_b32 v{PB+4}, 0, v{PB}, s[{sG23}:{sG23+1}]")
    w(f"  v_cndmask_b32 v{PB+5}, 0, v{PB+1}, s[{sG23}:{sG23+1}]")
    for p in range(1, 8):
        w(f"  s_waitcnt lgkmcnt({11-p})")
        for e in range(4):
            w(f"  v_add_f32 v{BA+e}, v{BA+e}, v{BA+4*p+e}")
    Dd = T
    w(f"  v_cvt_pk_bf16_f32 v{Dd}, v{BA}, v{BA+1}")
    w(f"  v_cvt_pk_bf16_f32 v{Dd+1}, v{BA+2}, v{BA+3}")
    for p in range(1, 4):
        w(f"  s_waitcnt lgkmcnt({3-p})")
        for e in range(4):
            w(f"  v_add_f32 v{BB+e}, v{BB+e}, v{BB+4*p+e}")
    w(f"  v_mfma_f32_16x16x16_bf16 {vr(Dd+8)}, {vr(Dd,2)}, {vr(PB+2,2)}, 0")
    w(f"  v_mfma_f32_16x16x16_bf16 {vr(Dd+12)}, {vr(Dd,2)}, {vr(PB+4,2)}, 0")
    for e in range(4):
        w(f"  v_mov_b32 v{BB+4+e}, v{BB+e}")
    w("  s_nop 1")
    for e in range(4):
        w(f"  v_permlane32_swap_b32 v{BB+e}, v{BB+4+e}")
    w("  s_nop 1")
    for e in range(4):
        w(f"  v_add_f32 v{BB+e}, v{BB+e}, v{BB+4+e}")
    w(f"  v_cvt_pk_bf16_f32 v{Dd+2}, v{BB}, v{BB+1}")
    w(f"  v_cvt_pk_bf16_f32 v{Dd+3}, v{BB+2}, v{BB+3}")
    w(f"  v_cvt_pk_bf16_f32 v{Dd+20}, v{Dd+8}, v{Dd+9}")
    w(f"  v_cvt_pk_bf16_f32 v{Dd+21}, v{Dd+10}, v{Dd+11}")
    w(f"  v_mfma_f32_16x16x16_bf16 {vr(Dd+16)}, {vr(Dd+2,2)}, {vr(PB+2,2)}, 0")
    w(f"  v_cvt_pk_bf16_f32 v{Dd+22}, v{Dd+12}, v{Dd+13}")
    w(f"  v_cvt_pk_bf16_f32 v{Dd+23}, v{Dd+14}, v{Dd+15}")
    w(f"  buffer_store_dwordx2 {vr(Dd+20,2)}, v{vOUT}, s[{SO}:{SO+3}], 0 offen")
    w(f"  buffer_store_dwordx2 {vr(Dd+22,2)}, v{vOUT}, s[{SO}:{SO+3}], 0 offen offset:32")
    w("  s_nop 7")
    w(f"  v_cvt_pk_bf16_f32 v{Dd+24}, v{Dd+16}, v{Dd+17}")
    w(f"  v_cvt_pk_bf16_f32 v{Dd+25}, v{Dd+18}, v{Dd+19}")
    w(f"  buffer_store_dwordx2 {vr(Dd+24,2)}, v{vOUT}, s[{SO}:{SO+3}], 0 offen offset:64")
    if stamps:
        w("  s_waitcnt vmcnt(0)")
        stamp(5)
        w("  s_waitcnt lgkmcnt(0)")
        w(f"  s_mul_i32 s92, s3, {NW}")
        w(f"  s_add_u32 s92, s92, s{sW}")
        w("  s_lshl_b32 s92, s92, 5")
        w("  s_add_u32 s88, s62, s92")
        w("  s_addc_u32 s89, s63, 0")
        w("  s_and_b32 s89, s89, 0xffff")
        w("  s_mov_b32 s90, 32")
        w("  s_mov_b32 s91, 0x00020000")
        for i in range(6):
            w(f"  v_mov_b32 v{ACC+i}, s{64+2*i}")
        w(f"  v_mov_b32 v{ACC+8}, 0")
        w("  s_mov_b64 exec, 1")
        w(f"  buffer_store_dwordx4 {vr(ACC)}, v{ACC+8}, s[88:91], 0 offen")
        w(f"  buffer_store_dwordx2 {vr(ACC+4,2)}, v{ACC+8}, s[88:91], 0 offen offset:16")
    w("L_end:")
    w("  s_endpgm")
    w('.section .rodata,"a"')
    w(".p2align 6")
    w(f".amdhsa_kernel {KNAME}")
    w(f"  .amdhsa_next_free_vgpr {NV}")
    w("  .amdhsa_next_free_sgpr 102")
    w(f"  .amdhsa_accum_offset {(NV+3)//4*4}")
    w("  .amdhsa_group_segment_fixed_size 0")
    w("  .amdhsa_kernarg_size 64")
    w("  .amdhsa_user_sgpr_count 2")
    w("  .amdhsa_user_sgpr_kernarg_segment_ptr 1")
    w("  .amdhsa_system_sgpr_workgroup_id_x 1")
    w(".end_amdhsa_kernel")
    return "\n".join(o) + "\n"


if __name__ == "__main__":
    out = sys.argv[1] if len(sys.argv) > 1 else "standalone__low_rank_proj_linformer__sampling.s"
    kw = {}
    for a in sys.argv[2:]:
        k_, v_ = a.split("=")
        try:
            kw[k_] = int(v_)
        except ValueError:
            kw[k_] = v_.replace("+", " ")
    open(out, "w").write(gen(**kw))
```

```python
import sys

KNAME = "standalone__low_rank_proj_linformer__sampling_kernel"

HEADER = """; Kernarg layout for this problem (64 bytes, ptrs only, base s[0:1]):
"""


def gen(nt=1, stamps=0, stag=1, minlds=84000, hmap=0, fc=1, D=6, maxtry=4096, csleep=4, ssleep=1, cst=1, cld=1, stpol='sc1', ldpol='sc1', gstride=1280, pubstep=2, full=1, lstride=128, S1=16, S2=8, SW=96, phm=5, tlbpf=1, lastbody=1, GS=8, S3=0, SW3=116, xcc=1):
    NW = 4
    o = []
    w = o.append
    NT = " nt" if nt else ""

    def stamp(i):
        if stamps:
            w(f"  s_memrealtime s[{64+2*i}:{65+2*i}]")

    HEADB = 4096 * 384
    BLKB = 64 * 384
    NBLK = 64
    JS = 26 * 16
    RS = 8 * JS
    PS = 2 * RS
    NPART = 2 * NW
    KPB = NPART * PS
    KPROW = 400
    PFR = KPB + 8 * KPROW
    CTR = PFR + 512
    LDS = CTR + 32
    LDS = max(LDS, minlds)
    LDS = (LDS + 255) // 256 * 256
    WSOFF = 1 << 20

    vS = [1, 2, 3]
    vA = 4
    vWP, vWQ, vRD = 5, 6, 7
    vKW, vKR, vOUT, vRD2 = 8, 9, 10, 11
    ARAW, ALO, AHI = 12, 16, 20
    T = 24
    QF = 56
    vCL, vCT, vPF, vOne = 80, 81, 82, 83
    ACC = 84
    RING = 148
    vLIM = RING + 96
    NV = RING + 100

    def accP(j): return ACC + 4 * j
    def accQ(j): return ACC + 32 + 4 * j
    def vr(b, n=4): return f"v[{b}:{b+n-1}]"

    SN, SA, SQ, SO = 16, 20, 24, 28
    sKb, sVb = 32, 34
    sW, sCur, sOffN, sOffA = 36, 37, 38, 39
    sSelLo, sSelHi = 40, 41
    sMLo, sMHi = 42, 44
    sTmp, sTmp2 = 46, 47
    sExQ = 48
    sG01, sG23 = 50, 52
    sC0, sC1 = 54, 55
    sNxt, sDump, sPi, sStag = 56, 57, 58, 59
    SD = 60
    sLim, sTry, sOff, sSlot, sLast = 96, 97, 98, 99, 100
    sWG = 3

    nthreads = (NW + (1 if fc else 0)) * 64
    w(HEADER.rstrip("\n"))
    w(f"; @launch grid=(256,1,1) block=({nthreads},1,1) lds={LDS}")
    w('.amdgcn_target "amdgcn-amd-amdhsa--gfx950"')
    w(".text")
    w(f".globl {KNAME}")
    w(".p2align 8")
    w(f".type {KNAME},@function")
    w(f"{KNAME}:")
    w("  s_cmp_ge_u32 s2, 256")
    w("  s_cbranch_scc1 L_end")
    stamp(0)
    w("  s_mov_b32 s3, s2")
    if hmap == 1:
        w("  s_lshr_b32 s60, s3, 3")
        w("  s_and_b32 s61, s3, 7")
        w("  s_lshl_b32 s61, s61, 5")
        w("  s_add_u32 s2, s60, s61")
    w("  s_load_dwordx8 s[4:11], s[0:1], 0")
    w("  s_load_dwordx4 s[12:15], s[0:1], 32")
    w("  s_load_dwordx4 s[76:79], s[0:1], 48")
    L, WV, G, C, CC, HF, G16, C16, G3K = T, T+1, T+2, T+3, T+4, T+5, T+6, T+7, T+8
    w(f"  v_and_b32 v{L}, 63, v0")
    w(f"  v_lshrrev_b32 v{WV}, 6, v0")
    w(f"  v_lshrrev_b32 v{G}, 4, v{L}")
    w(f"  v_and_b32 v{C}, 15, v{L}")
    w(f"  v_readfirstlane_b32 s{sW}, v{WV}")
    w(f"  v_mul_u32_u24 v{G3K}, 3072, v{G}")
    w(f"  v_lshlrev_b32 v{C16}, 4, v{C}")
    w(f"  v_mov_b32 v{vCT}, {CTR}")
    w(f"  v_mov_b32 v{vOne}, 1")
    if fc:
        w(f"  s_cmp_eq_u32 s{sW}, {NW}")
        w("  s_cbranch_scc1 L_ctrl")
    w(f"  v_add_u32 v{vS[0]}, v{G3K}, v{C16}")
    w(f"  v_add_u32 v{vS[2]}, {12288+128}, v{vS[0]}")
    w(f"  v_and_b32 v{CC}, 7, v{C}")
    w(f"  v_lshrrev_b32 v{HF}, 3, v{C}")
    w(f"  v_lshlrev_b32 v{T+9}, 4, v{CC}")
    w(f"  v_add_u32 v{T+9}, v{G3K}, v{T+9}")
    w(f"  v_mul_u32_u24 v{T+10}, {12288-256}, v{HF}")
    w(f"  v_add_u32 v{T+9}, v{T+9}, v{T+10}")
    w(f"  v_add_u32 v{vS[1]}, 256, v{T+9}")
    w(f"  v_lshlrev_b32 v{T+9}, 13, v{CC}")
    w(f"  v_lshlrev_b32 v{T+10}, 6, v{HF}")
    w(f"  v_lshlrev_b32 v{G16}, 4, v{G}")
    w(f"  v_add3_u32 v{vA}, v{T+9}, v{T+10}, v{G16}")
    w(f"  s_mul_i32 s{sTmp}, s2, {HEADB}")
    w(f"  s_mul_i32 s{sStag}, s2, {stag}")
    w(f"  s_add_u32 s{sTmp2}, s{sStag}, s{sW}")
    w(f"  s_and_b32 s{sTmp2}, s{sTmp2}, {NBLK-1}")
    w(f"  s_mul_i32 s{sOffN}, s{sTmp2}, {BLKB}")
    w(f"  s_lshl_b32 s{sOffA}, s{sTmp2}, 7")
    w(f"  s_mov_b32 s{SN+2}, {HEADB}")
    w(f"  s_mov_b32 s{SN+3}, 0x00020000")
    w(f"  s_mov_b32 s{SA+2}, 65536")
    w(f"  s_mov_b32 s{SA+3}, 0x00020000")
    w("  s_waitcnt lgkmcnt(0)")
    w(f"  s_add_u32 s{sKb}, s6, s{sTmp}")
    w(f"  s_addc_u32 s{sKb+1}, s7, 0")
    w(f"  s_and_b32 s{sKb+1}, s{sKb+1}, 0xffff")
    w(f"  s_mov_b32 s{SN}, s{sKb}")
    w(f"  s_mov_b32 s{SN+1}, s{sKb+1}")
    w(f"  s_mov_b32 s{SA}, s10")
    w(f"  s_and_b32 s{SA+1}, s11, 0xffff")

    def loads(unit_set, ring_slot, rows=range(8)):
        for i in rows:
            w(f"  buffer_load_dwordx4 {vr(RING + 32*ring_slot + 4*i)}, v{vS[unit_set]}, s[{SN}:{SN+3}], s{sOffN} offen offset:{i*384}{NT}")

    def loadA():
        w(f"  buffer_load_dwordx4 {vr(ARAW)}, v{vA}, s[{SA}:{SA+3}], s{sOffA} offen")

    UNITS = [(1, ARAW, accQ), (0, ALO, accP), (2, AHI, accP)]

    loads(UNITS[0][0], 0)
    loadA()
    loads(UNITS[1][0], 1)
    loads(UNITS[2][0], 2)
    stamp(1)
    w(f"  s_add_u32 s{sVb}, s8, s{sTmp}")
    w(f"  s_addc_u32 s{sVb+1}, s9, 0")
    w(f"  s_and_b32 s{sVb+1}, s{sVb+1}, 0xffff")
    w(f"  s_and_b32 s11, s11, 0xffff")
    w(f"  s_and_b32 s13, s13, 0xffff")
    w(f"  s_mul_i32 s{sTmp2}, s2, 6144")
    w(f"  s_add_u32 s{SQ}, s4, s{sTmp2}")
    w(f"  s_addc_u32 s{SQ+1}, s5, 0")
    w(f"  s_and_b32 s{SQ+1}, s{SQ+1}, 0xffff")
    w(f"  s_mov_b32 s{SQ+2}, 6144")
    w(f"  s_mov_b32 s{SQ+3}, 0x00020000")
    w(f"  s_add_u32 s{SO}, s14, s{sTmp2}")
    w(f"  s_addc_u32 s{SO+1}, s15, 0")
    w(f"  s_and_b32 s{SO+1}, s{SO+1}, 0xffff")
    w(f"  s_mov_b32 s{SO+2}, 6144")
    w(f"  s_mov_b32 s{SO+3}, 0x00020000")
    w(f"  s_mov_b32 s{sSelLo}, 0x05040100")
    w(f"  s_mov_b32 s{sSelHi}, 0x07060302")
    w(f"  s_mov_b32 s{sMLo}, 0x00ff00ff")
    w(f"  s_mov_b32 s{sMLo+1}, 0x00ff00ff")
    w(f"  s_mov_b32 s{sMHi}, 0xff00ff00")
    w(f"  s_mov_b32 s{sMHi+1}, 0xff00ff00")
    w(f"  s_mov_b32 s{sExQ}, 0x00ff00ff")
    w(f"  s_mov_b32 s{sExQ+1}, 0xff00ff00")
    w(f"  s_mov_b32 s{sG01}, -1")
    w(f"  s_mov_b32 s{sG01+1}, 0")
    w(f"  s_mov_b32 s{sG23}, 0")
    w(f"  s_mov_b32 s{sG23+1}, -1")
    w(f"  s_mov_b32 s{sCur}, s{sW}")
    w(f"  s_mov_b32 s{sDump}, 0")
    w(f"  s_mov_b32 s{sOff}, 0")
    QO = T + 11
    w(f"  v_mul_u32_u24 v{QO}, 384, v{C}")
    w(f"  v_add_u32 v{QO}, v{QO}, v{G16}")
    for t in range(6):
        w(f"  buffer_load_dwordx4 {vr(QF+4*t)}, v{QO}, s[{SQ}:{SQ+3}], 0 offen offset:{t*64}")
    PART, RH, X1, X2, X3 = T+12, T+13, T+14, T+15, T+16
    w(f"  v_lshrrev_b32 v{PART}, 1, v{G}")
    w(f"  v_and_b32 v{RH}, 1, v{G}")
    w(f"  v_lshlrev_b32 v{X1}, 1, v{WV}")
    w(f"  v_add_u32 v{X1}, v{X1}, v{PART}")
    w(f"  v_mul_u32_u24 v{X1}, {PS}, v{X1}")
    w(f"  v_mul_u32_u24 v{X2}, {RS}, v{RH}")
    w(f"  v_add_u32 v{X1}, v{X1}, v{X2}")
    w(f"  v_lshlrev_b32 v{X3}, 7, v{PART}")
    w(f"  v_add3_u32 v{vWP}, v{X1}, v{X3}, v{C16}")
    w(f"  v_mul_u32_u24 v{X3}, 384, v{PART}")
    w(f"  v_add_u32 v{X1}, v{X1}, v{C16}")
    w(f"  v_add_u32 v{X1}, 256, v{X1}")
    w(f"  v_sub_u32 v{vWQ}, v{X1}, v{X3}")
    w(f"  v_lshlrev_b32 v{X1}, 1, v{PART}")
    w(f"  v_add_u32 v{X1}, v{X1}, v{HF}")
    w(f"  v_lshlrev_b32 v{X1}, 4, v{X1}")
    w(f"  v_mul_u32_u24 v{X3}, {JS}, v{CC}")
    w(f"  v_add3_u32 v{vRD}, v{X1}, v{X3}, v{X2}")
    w(f"  v_lshlrev_b32 v{X1}, 4, v{PART}")
    w(f"  v_add_u32 v{X1}, v{X1}, v{C}")
    w(f"  v_lshlrev_b32 v{X1}, 1, v{X1}")
    w(f"  v_mul_u32_u24 v{X3}, {4*KPROW}, v{RH}")
    w(f"  v_add_u32 v{X3}, {KPB}, v{X3}")
    w(f"  v_add_u32 v{vKW}, v{X1}, v{X3}")
    w(f"  v_mul_u32_u24 v{X3}, {KPROW}, v{CC}")
    w(f"  v_add_u32 v{X3}, {KPB}, v{X3}")
    w(f"  v_add_u32 v{vKR}, v{X3}, v{G16}")
    w(f"  v_mul_u32_u24 v{X1}, 384, v{C}")
    w(f"  v_mul_u32_u24 v{X2}, 96, v{WV}")
    w(f"  v_lshlrev_b32 v{X3}, 3, v{G}")
    w(f"  v_add3_u32 v{vOUT}, v{X1}, v{X2}, v{X3}")
    w(f"  v_mul_u32_u24 v{X1}, {RS}, v{RH}")
    w(f"  v_mul_u32_u24 v{X2}, {JS}, v{CC}")
    w(f"  v_lshlrev_b32 v{X3}, 4, v{HF}")
    w(f"  v_add3_u32 v{X1}, v{X1}, v{X2}, v{X3}")
    w(f"  v_mul_u32_u24 v{X2}, {4*PS}, v{PART}")
    w(f"  v_add_u32 v{X1}, v{X1}, v{X2}")
    w(f"  v_add_u32 v{vRD2}, 64, v{X1}")
    w(f"  v_lshlrev_b32 v{X1}, 3, v{L}")
    w(f"  v_add_u32 v{vPF}, {PFR}, v{X1}")

    def init_counters():
        w(f"  v_mov_b32 v{X1}, {NW}")
        w(f"  v_mov_b32 v{X2}, 0")
        w(f"  v_mov_b32 v{X3}, 0")
        w(f"  v_mov_b32 v{X3+1}, 255")
        w(f"  v_mov_b32 v{X3+2}, 0")
        w(f"  v_mov_b32 v{X3+3}, 0")
        w(f"  ds_write_b128 v{vCT}, {vr(X1)}")
        w(f"  ds_write_b64 v{vCT}, {vr(X3+2,2)} offset:16")
        w("  s_waitcnt lgkmcnt(0)")

    if not fc:
        w(f"  s_cmp_lg_u32 s{sW}, 0")
        w("  s_cbranch_scc1 L_noinit")
        init_counters()
        w("L_noinit:")
    for r in range(64):
        w(f"  v_mov_b32 v{ACC+r}, 0")
    w("  s_barrier")
    if stamps:
        w("  s_waitcnt vmcnt(22)")
        stamp(2)

    def body_last():
        for u, (st, areg, accf) in enumerate(UNITS):
            if u == 1:
                w("  s_waitcnt vmcnt(8)")
            if u == 2:
                w("  s_waitcnt vmcnt(0)")
            R = RING + 32 * u
            for dw in range(4):
                for m in range(4):
                    x = R + 4 * (2 * m) + dw
                    y = R + 4 * (2 * m + 1) + dw
                    w(f"  v_perm_b32 v{T + 4*(2*dw) + m}, v{y}, v{x}, s{sSelLo}")
                    w(f"  v_perm_b32 v{T + 4*(2*dw+1) + m}, v{y}, v{x}, s{sSelHi}")
                if dw >= 1:
                    for j in (2*(dw-1), 2*(dw-1)+1):
                        w(f"  v_mfma_f32_16x16x32_bf16 {vr(accf(j))}, {vr(areg)}, {vr(T+4*j)}, {vr(accf(j))}")
            w("  s_nop 1")
            for j in (6, 7):
                w(f"  v_mfma_f32_16x16x32_bf16 {vr(accf(j))}, {vr(areg)}, {vr(T+4*j)}, {vr(accf(j))}")

    def body(first=False):
        extra = 6 if first else 0
        tag = "f" if first else "l"
        w("  s_mov_b64 exec, 1")
        w(f"  ds_add_rtn_u32 v{vCL}, v{vCT}, v{vOne}")
        w("  s_mov_b64 exec, -1")
        if fc:
            w(f"  ds_read_b32 v{vLIM}, v{vCT} offset:12")
        for u, (st, areg, accf) in enumerate(UNITS):
            n_out = (16 if u == 0 else 17) + extra
            w(f"  s_waitcnt vmcnt({n_out})")
            if u == 0:
                w("  s_waitcnt lgkmcnt(0)")
                w(f"  v_readfirstlane_b32 s{sNxt}, v{vCL}")
                if fc:
                    w(f"  v_readfirstlane_b32 s{sLim}, v{vLIM}")
                for e in range(4):
                    w(f"  v_cndmask_b32 v{ALO+e}, 0, v{ARAW+e}, s[{sMLo}:{sMLo+1}]")
                    w(f"  v_cndmask_b32 v{AHI+e}, 0, v{ARAW+e}, s[{sMHi}:{sMHi+1}]")
                if lastbody and not first:
                    w(f"  s_cmp_ge_u32 s{sNxt}, {2*NBLK}")
                    w("  s_cbranch_scc1 L_last")
                if fc:
                    w(f"  s_cmp_gt_u32 s{sNxt}, s{sLim}")
                    w(f"  s_cbranch_scc1 L_stall_{tag}")
                    w(f"L_cont_{tag}:")
                w(f"  s_cmp_ge_u32 s{sNxt}, {NBLK}")
                w(f"  s_cselect_b32 s{SN}, s{sVb}, s{sKb}")
                w(f"  s_cselect_b32 s{SN+1}, s{sVb+1}, s{sKb+1}")
                w(f"  s_cselect_b32 s{SA}, s12, s10")
                w(f"  s_cselect_b32 s{SA+1}, s13, s11")
                w(f"  s_cmp_ge_u32 s{sNxt}, {2*NBLK}")
                w(f"  s_cselect_b32 s{SN+2}, 0, {HEADB}")
                w(f"  s_cselect_b32 s{SA+2}, 0, 65536")
                w(f"  s_add_u32 s{sTmp}, s{sNxt}, s{sStag}")
                w(f"  s_and_b32 s{sTmp}, s{sTmp}, {NBLK-1}")
                w(f"  s_mul_i32 s{sOffN}, s{sTmp}, {BLKB}")
                w(f"  s_lshl_b32 s{sOffA}, s{sTmp}, 7")
            R = RING + 32 * u
            for m in range(4):
                for dw in range(4):
                    x = R + 4 * (2 * m) + dw
                    y = R + 4 * (2 * m + 1) + dw
                    w(f"  v_perm_b32 v{T + 4*(2*dw) + m}, v{y}, v{x}, s{sSelLo}")
                    w(f"  v_perm_b32 v{T + 4*(2*dw+1) + m}, v{y}, v{x}, s{sSelHi}")
                loads(st, u, rows=(2 * m, 2 * m + 1))
            for j in range(8):
                w(f"  v_mfma_f32_16x16x32_bf16 {vr(accf(j))}, {vr(areg)}, {vr(T+4*j)}, {vr(accf(j))}")
            if u == 0:
                loadA()

    def after_body():
        w(f"  s_mov_b32 s{sCur}, s{sNxt}")
        w(f"  s_cmp_lt_u32 s{sCur}, {NBLK}")
        w("  s_cbranch_scc1 L_loop")
        w(f"  s_cmp_eq_u32 s{sDump}, 0")
        w("  s_cbranch_scc1 L_dumpK")

    body(first=True)
    after_body()
    w("  s_branch L_chk")
    w("L_loop:")
    body()
    after_body()
    w("L_chk:")
    w(f"  s_cmp_lt_u32 s{sCur}, {2*NBLK}")
    w("  s_cbranch_scc1 L_loop")
    w("  s_branch L_tail")

    def dump():
        w("  s_nop 7")
        w("  s_nop 1")
        for j in range(8):
            w(f"  ds_write_b128 v{vWP}, {vr(accP(j))} offset:{j*JS}")
        w(f"  s_mov_b64 exec, s[{sExQ}:{sExQ+1}]")
        for j in range(8):
            w(f"  ds_write_b128 v{vWQ}, {vr(accQ(j))} offset:{j*JS}")
        w("  s_mov_b64 exec, -1")

    if fc:
        for tag in ("f", "l"):
            w(f"L_stall_{tag}:")
            w(f"  s_cmp_ge_u32 s{sNxt}, {2*NBLK}")
            w(f"  s_cbranch_scc1 L_cont_{tag}")
            w(f"  s_cmp_lg_u32 s{sOff}, 0")
            w(f"  s_cbranch_scc1 L_cont_{tag}")
            w(f"  s_mov_b32 s{sTry}, 0")
            w(f"L_st_{tag}:")
            w(f"  s_sleep {ssleep}")
            w(f"  ds_read_b32 v{vLIM}, v{vCT} offset:12")
            w("  s_waitcnt lgkmcnt(0)")
            w(f"  v_readfirstlane_b32 s{sLim}, v{vLIM}")
            w("  s_nop 3")
            w(f"  s_cmp_le_u32 s{sNxt}, s{sLim}")
            w(f"  s_cbranch_scc1 L_cont_{tag}")
            w(f"  s_add_u32 s{sTry}, s{sTry}, 1")
            w(f"  s_cmp_lt_u32 s{sTry}, {maxtry}")
            w(f"  s_cbranch_scc1 L_st_{tag}")
            w(f"  s_mov_b32 s{sOff}, 1")
            w(f"  s_branch L_cont_{tag}")

        w("L_ctrl:")
        init_counters()
        w("  s_barrier")
        w("  s_setprio 3")
        w("  s_mov_b32 s62, s78")
        w("  s_mov_b32 s63, s79")
        if xcc:
            SG = 80
            w(f"  s_mov_b32 s{SG}, s76")
            w(f"  s_and_b32 s{SG+1}, s77, 0xffff")
            w(f"  s_mov_b32 s{SG+2}, 256")
            w(f"  s_mov_b32 s{SG+3}, 0x00020000")
            w("  s_getreg_b32 s84, hwreg(HW_REG_XCC_ID, 0, 4)")
            w("  s_and_b32 s84, s84, 7")
            w("  s_lshl_b32 s85, s84, 2")
            w("  v_mov_b32 v7, 1")
            w("  s_mov_b64 exec, 1")
            w(f"  buffer_atomic_add v7, off, s[{SG}:{SG+3}], s85 sc0")
            w("  s_mov_b64 exec, -1")
        if tlbpf:
            w(f"  s_mul_i32 s{sTmp}, s2, {HEADB}")
            w(f"  s_add_u32 s{SN}, s6, s{sTmp}")
            w(f"  s_addc_u32 s{SN+1}, s7, 0")
            w(f"  s_and_b32 s{SN+1}, s{SN+1}, 0xffff")
            w(f"  s_mov_b32 s{SN+2}, {HEADB}")
            w(f"  s_mov_b32 s{SN+3}, 0x00020000")
            w(f"  s_add_u32 s{SA}, s8, s{sTmp}")
            w(f"  s_addc_u32 s{SA+1}, s9, 0")
            w(f"  s_and_b32 s{SA+1}, s{SA+1}, 0xffff")
            w(f"  s_mov_b32 s{SA+2}, {HEADB}")
            w(f"  s_mov_b32 s{SA+3}, 0x00020000")
            w(f"  v_lshlrev_b32 v12, 18, v{L}")
            w(f"  buffer_load_dword v13, v12, s[{SA}:{SA+3}], 0 offen nt")
            w(f"  buffer_load_dword v14, v12, s[{SN}:{SN+3}], 0 offen nt")
        gsh = GS.bit_length() - 1
        sGrp, sMem, sAll = 86, 87, 88
        if xcc:
            assert GS == 8
            w("  s_waitcnt vmcnt(0)")
            w(f"  v_readfirstlane_b32 s{sGrp}, v7")
            w(f"  s_mov_b32 s{sMem}, s84")
            w(f"  s_mov_b32 s{sAll}, 0")
            w("  s_nop 3")
        else:
            w(f"  s_lshr_b32 s{sGrp}, s{sWG}, {gsh}")
            w(f"  s_and_b32 s{sMem}, s{sWG}, {GS-1}")
            w(f"  s_mov_b32 s{sAll}, 1")
        GSTR = GS*lstride+256
        w(f"  s_min_u32 s{sGrp}, s{sGrp}, 255")
        w(f"  s_mul_i32 s{sTry}, s{sGrp}, {GSTR}")
        w(f"  s_add_u32 s{SD}, s62, {WSOFF}")
        w(f"  s_addc_u32 s{SD+1}, s63, 0")
        w(f"  s_and_b32 s{SD+1}, s{SD+1}, 0xffff")
        if not full:
            w(f"  s_mov_b32 s{SD+2}, 32")
            w(f"  s_mov_b32 s{SD+3}, 0x00020000")
            w(f"  s_and_b32 s{sSlot}, s{sWG}, 7")
            w(f"  s_lshl_b32 s{sSlot}, s{sSlot}, 2")
            w(f"  v_and_b32 v1, 7, v{L}")
            w("  v_lshlrev_b32 v1, 2, v1")
        else:
            w(f"  s_mov_b32 s{SD+2}, {256*GSTR}")
            w(f"  s_mov_b32 s{SD+3}, 0x00020000")
            w(f"  s_mul_i32 s{sSlot}, s{sMem}, {lstride}")
            w(f"  s_add_u32 s{sSlot}, s{sSlot}, s{sTry}")
            w(f"  v_and_b32 v1, 7, v{L}")
            w(f"  v_lshlrev_b32 v6, 4, v1")
            w(f"  v_and_b32 v1, {GS-1}, v{L}")
            w(f"  v_mul_u32_u24 v1, {lstride}, v1")
        w(f"  v_lshrrev_b32 v12, 4, v6")
        w(f"  v_lshlrev_b32 v12, 2, v12")
        w(f"  s_mul_i32 s{sTmp}, s{sGrp}, {phm}")
        w(f"  s_and_b32 s{sTmp}, s{sTmp}, {S1-1}")
        w(f"  s_sub_u32 s{sLast}, {S1}, s{sTmp}")
        w(f"  v_mov_b32 v8, s{sLast}")
        w(f"  v_mov_b32 v9, s{sLast}")
        w(f"  v_mov_b32 v10, s{sLast}")
        w(f"  v_mov_b32 v11, s{sLast}")
        w(f"  s_mov_b64 exec, 255")
        if cst:
            w(f"  buffer_store_dwordx4 v[8:11], v6, s[{SD}:{SD+3}], s{sSlot} offen {stpol}")
        w("  s_mov_b64 exec, -1")
        w("L_cl:")
        w(f"  ds_read_b32 v2, v{vCT}")
        w("  s_waitcnt lgkmcnt(0)")
        w(f"  v_readfirstlane_b32 s{sNxt}, v2")
        w("  s_nop 3")
        w(f"  s_cmp_ge_u32 s{sNxt}, {2*NBLK}")
        w("  s_cbranch_scc1 L_cfin")
        w(f"  s_cmp_lt_u32 s{sNxt}, s{sLast}")
        w("  s_cbranch_scc1 L_cnopub")
        w(f"  s_cmp_ge_u32 s{sLast}, {SW}")
        w(f"  s_cselect_b32 s{sTmp}, {S2}, {S1}")
        if S3:
            w(f"  s_cmp_ge_u32 s{sLast}, {SW3}")
            w(f"  s_cselect_b32 s{sTmp}, {S3}, s{sTmp}")
        w(f"  s_add_u32 s{sLast}, s{sLast}, s{sTmp}")
        w("L_cpub:")
        w(f"  v_mov_b32 v8, s{sLast}")
        w(f"  v_mov_b32 v9, s{sLast}")
        w(f"  v_mov_b32 v10, s{sLast}")
        w(f"  v_mov_b32 v11, s{sLast}")
        w(f"  s_mov_b64 exec, 255")
        if cst:
            w(f"  buffer_store_dwordx4 v[8:11], v6, s[{SD}:{SD+3}], s{sSlot} offen {stpol}")
        w("  s_mov_b64 exec, -1")
        w("L_cnopub:")
        w(f"  buffer_load_dword v4, v1, s[{SD}:{SD+3}], s{sTry} offen {ldpol}")
        if xcc:
            w(f"  s_cmp_lg_u32 s{sAll}, 0")
            w("  s_cbranch_scc1 L_call")
            w(f"  buffer_load_dword v13, v12, s[{SG}:{SG+3}], 0 offen sc1")
            w("  s_waitcnt vmcnt(0)")
            w(f"  v_cmp_lt_u32 vcc, s{sGrp}, v13")
            w("  v_mov_b32 v14, 255")
            w("  s_nop 0")
            w("  v_cndmask_b32 v4, v14, v4, vcc")
            w("  s_cmp_eq_u64 vcc, -1")
            w(f"  s_cselect_b32 s{sAll}, 1, 0")
            w("L_call:")
        w("  s_waitcnt vmcnt(0)")
        if GS > 8:
            for sh in (1, 2, 4, 8):
                w("  s_nop 1")
                w(f"  v_min_u32_dpp v4, v4, v4 row_ror:{sh} row_mask:0xf bank_mask:0xf")
            w("  s_nop 1")
            nrow = GS // 16
            for i in range(nrow):
                w(f"  v_readlane_b32 s{64+i}, v4, {16*i}")
            w("  s_nop 3")
            for i in range(1, nrow):
                w(f"  s_min_u32 s64, s64, s{64+i}")
        else:
            for i in range(8):
                w(f"  v_readlane_b32 s{64+i}, v4, {i}")
            w("  s_nop 3")
            for i in range(1, 8):
                w(f"  s_min_u32 s64, s64, s{64+i}")
        w(f"  s_min_u32 s64, s64, 250")
        w(f"  s_add_u32 s64, s64, {D}")
        w("  v_mov_b32 v5, s64")
        w("  s_mov_b64 exec, 1")
        w(f"  ds_write_b32 v{vCT}, v5 offset:12")
        w("  s_mov_b64 exec, -1")
        if csleep:
            w(f"  s_sleep {csleep}")
        w("  s_branch L_cl")
        w("L_cfin:")
        w("  v_mov_b32 v8, 255")
        w("  v_mov_b32 v9, 255")
        w("  v_mov_b32 v10, 255")
        w("  v_mov_b32 v11, 255")
        w(f"  s_mov_b64 exec, 255")
        if cst:
            w(f"  buffer_store_dwordx4 v[8:11], v6, s[{SD}:{SD+3}], s{sSlot} offen {stpol}")
        w("L_cexit:")
        w("  v_mov_b32 v5, 255")
        w("  s_mov_b64 exec, 1")
        w(f"  ds_write_b32 v{vCT}, v5 offset:12")
        w("  s_endpgm")

    def reduce_partials(dst, va):
        for p in range(8):
            w(f"  ds_read_b128 {vr(T+4*p)}, v{va} offset:{p*PS}")
        for p in range(8):
            w(f"  s_waitcnt lgkmcnt({7-p})")
            for e in range(4):
                if p == 0:
                    w(f"  v_mov_b32 v{dst+e}, v{T+4*p+e}")
                else:
                    w(f"  v_add_f32 v{dst+e}, v{dst+e}, v{T+4*p+e}")

    w("L_dumpK:")
    stamp(3)
    w(f"  s_mov_b32 s{sDump}, 1")
    dump()
    w("  s_mov_b64 exec, 1")
    w(f"  ds_add_rtn_u32 v{vCL}, v{vCT}, v{vOne} offset:4")
    w("  s_mov_b64 exec, -1")
    for r in range(64):
        w(f"  v_mov_b32 v{ACC+r}, 0")
    w("  s_waitcnt lgkmcnt(0)")
    w(f"  v_readfirstlane_b32 s{sTmp}, v{vCL}")
    w("  s_nop 3")
    w(f"  s_cmp_lg_u32 s{sTmp}, {NW-1}")
    w("  s_cbranch_scc1 L_chk")
    SUM = ALO
    VA, VK = AHI, AHI+2
    w(f"  v_mov_b32 v{VA}, v{vRD}")
    w(f"  v_mov_b32 v{VK}, v{vKW}")
    w(f"  s_mov_b32 s{sPi}, 0")
    w("L_kred:")
    reduce_partials(SUM, VA)
    w(f"  v_cvt_pk_bf16_f32 v{T}, v{SUM}, v{SUM+1}")
    w(f"  v_cvt_pk_bf16_f32 v{T+1}, v{SUM+2}, v{SUM+3}")
    w(f"  ds_write_b16 v{VK}, v{T} offset:0")
    w(f"  ds_write_b16_d16_hi v{VK}, v{T} offset:{KPROW}")
    w(f"  ds_write_b16 v{VK}, v{T+1} offset:{2*KPROW}")
    w(f"  ds_write_b16_d16_hi v{VK}, v{T+1} offset:{3*KPROW}")
    w(f"  v_add_u32 v{VA}, 64, v{VA}")
    w(f"  v_add_u32 v{VK}, 64, v{VK}")
    w(f"  s_add_u32 s{sPi}, s{sPi}, 1")
    w(f"  s_cmp_lt_u32 s{sPi}, 6")
    w("  s_waitcnt lgkmcnt(0)")
    w("  s_cbranch_scc1 L_kred")
    S = T + 24
    for e in range(4):
        w(f"  v_mov_b32 v{S+e}, 0")
    for t in range(6):
        w(f"  ds_read_b128 {vr(T+4*t)}, v{vKR} offset:{t*64}")
    w("  s_waitcnt vmcnt(25)")
    for t in range(6):
        w(f"  s_waitcnt lgkmcnt({5-t})")
        w(f"  v_mfma_f32_16x16x32_bf16 {vr(S)}, {vr(T+4*t)}, {vr(QF+4*t)}, {vr(S)}")
    w("  s_nop 7")
    w("  s_nop 1")
    w(f"  s_mov_b32 s{sC0}, 0x3d93cd3a")
    w(f"  s_mov_b32 s{sC1}, 0x3fb8aa3b")
    X = T
    for rep in range(2):
        w(f"  v_cvt_pk_bf16_f32 v{X}, v{S}, v{S+1}")
        w(f"  v_cvt_pk_bf16_f32 v{X+1}, v{S+2}, v{S+3}")
        w(f"  v_lshlrev_b32 v{S}, 16, v{X}")
        w(f"  v_and_b32 v{S+1}, 0xffff0000, v{X}")
        w(f"  v_lshlrev_b32 v{S+2}, 16, v{X+1}")
        w(f"  v_and_b32 v{S+3}, 0xffff0000, v{X+1}")
        if rep == 0:
            for e in range(4):
                w(f"  v_mul_f32 v{S+e}, s{sC0}, v{S+e}")
    w(f"  v_max_f32 v{X}, v{S}, v{S+1}")
    w(f"  v_max3_f32 v{X}, v{X}, v{S+2}, v{S+3}")
    w(f"  ds_swizzle_b32 v{X+1}, v{X} offset:0x401F")
    w("  s_waitcnt lgkmcnt(0)")
    w(f"  v_max_f32 v{X}, v{X}, v{X+1}")
    for e in range(4):
        w(f"  v_sub_f32 v{S+e}, v{S+e}, v{X}")
    for e in range(4):
        w(f"  v_mul_f32 v{S+e}, s{sC1}, v{S+e}")
    for e in range(4):
        w(f"  v_exp_f32 v{S+e}, v{S+e}")
    w("  s_nop 0")
    w(f"  v_add_f32 v{X}, v{S}, v{S+1}")
    w(f"  v_add_f32 v{X+1}, v{S+2}, v{S+3}")
    w(f"  v_add_f32 v{X}, v{X}, v{X+1}")
    w(f"  ds_swizzle_b32 v{X+1}, v{X} offset:0x401F")
    w("  s_waitcnt lgkmcnt(0)")
    w(f"  v_add_f32 v{X}, v{X}, v{X+1}")
    w(f"  v_rcp_f32 v{X}, v{X}")
    w("  s_nop 0")
    for e in range(4):
        w(f"  v_mul_f32 v{S+e}, v{S+e}, v{X}")
    w(f"  v_cvt_pk_bf16_f32 v{X}, v{S}, v{S+1}")
    w(f"  v_cvt_pk_bf16_f32 v{X+1}, v{S+2}, v{S+3}")
    w(f"  ds_write_b64 v{vPF}, {vr(X,2)}")
    w("  s_mov_b64 exec, 1")
    w(f"  ds_write_b32 v{vCT}, v{vOne} offset:8")
    w("  s_mov_b64 exec, -1")
    w("  s_waitcnt lgkmcnt(0)")
    w("  s_branch L_chk")

    if lastbody:
        w("L_last:")
        body_last()
        w(f"  s_mov_b32 s{sCur}, s{sNxt}")
        w(f"  s_cmp_eq_u32 s{sDump}, 0")
        w("  s_cbranch_scc1 L_dumpK")
    w("L_tail:")
    stamp(4)
    w("L_spin:")
    w(f"  ds_read_b32 v{vCL}, v{vCT} offset:8")
    w("  s_waitcnt lgkmcnt(0)")
    w(f"  v_readfirstlane_b32 s{sTmp}, v{vCL}")
    w("  s_nop 3")
    w(f"  s_cmp_lg_u32 s{sTmp}, 0")
    w("  s_cbranch_scc1 L_go")
    w("  s_sleep 1")
    w("  s_branch L_spin")
    w("L_go:")
    dump()
    PB = QF
    w(f"  ds_read_b64 {vr(PB,2)}, v{vPF}")
    w("  s_mov_b64 exec, 1")
    w(f"  ds_add_u32 v{vCT}, v{vOne} offset:16")
    w("  s_mov_b64 exec, -1")
    w(f"  s_mul_i32 s{sTmp}, s{sW}, 96")
    w(f"  v_add_u32 v{vRD}, s{sTmp}, v{vRD}")
    w(f"  v_add_u32 v{vRD2}, s{sTmp}, v{vRD2}")
    w("L_vspin:")
    w(f"  ds_read_b32 v{vCL}, v{vCT} offset:16")
    w("  s_waitcnt lgkmcnt(0)")
    w(f"  v_readfirstlane_b32 s{sTmp}, v{vCL}")
    w("  s_nop 3")
    w(f"  s_cmp_lt_u32 s{sTmp}, {NW}")
    w("  s_cbranch_scc1 L_vspin")
    BA = ACC
    BB = ACC + 32
    for p in range(8):
        w(f"  ds_read_b128 {vr(BA+4*p)}, v{vRD} offset:{p*PS}")
    for p in range(4):
        w(f"  ds_read_b128 {vr(BB+4*p)}, v{vRD2} offset:{p*PS}")
    w(f"  v_cndmask_b32 v{PB+2}, 0, v{PB}, s[{sG01}:{sG01+1}]")
    w(f"  v_cndmask_b32 v{PB+3}, 0, v{PB+1}, s[{sG01}:{sG01+1}]")
    w(f"  v_cndmask_b32 v{PB+4}, 0, v{PB}, s[{sG23}:{sG23+1}]")
    w(f"  v_cndmask_b32 v{PB+5}, 0, v{PB+1}, s[{sG23}:{sG23+1}]")
    for p in range(1, 8):
        w(f"  s_waitcnt lgkmcnt({11-p})")
        for e in range(4):
            w(f"  v_add_f32 v{BA+e}, v{BA+e}, v{BA+4*p+e}")
    Dd = T
    w(f"  v_cvt_pk_bf16_f32 v{Dd}, v{BA}, v{BA+1}")
    w(f"  v_cvt_pk_bf16_f32 v{Dd+1}, v{BA+2}, v{BA+3}")
    for p in range(1, 4):
        w(f"  s_waitcnt lgkmcnt({3-p})")
        for e in range(4):
            w(f"  v_add_f32 v{BB+e}, v{BB+e}, v{BB+4*p+e}")
    w(f"  v_mfma_f32_16x16x16_bf16 {vr(Dd+8)}, {vr(Dd,2)}, {vr(PB+2,2)}, 0")
    w(f"  v_mfma_f32_16x16x16_bf16 {vr(Dd+12)}, {vr(Dd,2)}, {vr(PB+4,2)}, 0")
    for e in range(4):
        w(f"  v_mov_b32 v{BB+4+e}, v{BB+e}")
    w("  s_nop 1")
    for e in range(4):
        w(f"  v_permlane32_swap_b32 v{BB+e}, v{BB+4+e}")
    w("  s_nop 1")
    for e in range(4):
        w(f"  v_add_f32 v{BB+e}, v{BB+e}, v{BB+4+e}")
    w(f"  v_cvt_pk_bf16_f32 v{Dd+2}, v{BB}, v{BB+1}")
    w(f"  v_cvt_pk_bf16_f32 v{Dd+3}, v{BB+2}, v{BB+3}")
    w(f"  v_cvt_pk_bf16_f32 v{Dd+20}, v{Dd+8}, v{Dd+9}")
    w(f"  v_cvt_pk_bf16_f32 v{Dd+21}, v{Dd+10}, v{Dd+11}")
    w(f"  v_mfma_f32_16x16x16_bf16 {vr(Dd+16)}, {vr(Dd+2,2)}, {vr(PB+2,2)}, 0")
    w(f"  v_cvt_pk_bf16_f32 v{Dd+22}, v{Dd+12}, v{Dd+13}")
    w(f"  v_cvt_pk_bf16_f32 v{Dd+23}, v{Dd+14}, v{Dd+15}")
    w(f"  buffer_store_dwordx2 {vr(Dd+20,2)}, v{vOUT}, s[{SO}:{SO+3}], 0 offen")
    w(f"  buffer_store_dwordx2 {vr(Dd+22,2)}, v{vOUT}, s[{SO}:{SO+3}], 0 offen offset:32")
    w("  s_nop 7")
    w(f"  v_cvt_pk_bf16_f32 v{Dd+24}, v{Dd+16}, v{Dd+17}")
    w(f"  v_cvt_pk_bf16_f32 v{Dd+25}, v{Dd+18}, v{Dd+19}")
    w(f"  buffer_store_dwordx2 {vr(Dd+24,2)}, v{vOUT}, s[{SO}:{SO+3}], 0 offen offset:64")
    if stamps:
        w("  s_waitcnt vmcnt(0)")
        stamp(5)
        w("  s_waitcnt lgkmcnt(0)")
        w(f"  s_mul_i32 s92, s3, {NW}")
        w(f"  s_add_u32 s92, s92, s{sW}")
        w("  s_lshl_b32 s92, s92, 5")
        w("  s_add_u32 s88, s78, s92")
        w("  s_addc_u32 s89, s79, 0")
        w("  s_and_b32 s89, s89, 0xffff")
        w("  s_mov_b32 s90, 32")
        w("  s_mov_b32 s91, 0x00020000")
        for i in range(6):
            w(f"  v_mov_b32 v{ACC+i}, s{64+2*i}")
        w(f"  v_mov_b32 v{ACC+8}, 0")
        w("  s_mov_b64 exec, 1")
        w(f"  buffer_store_dwordx4 {vr(ACC)}, v{ACC+8}, s[88:91], 0 offen")
        w(f"  buffer_store_dwordx2 {vr(ACC+4,2)}, v{ACC+8}, s[88:91], 0 offen offset:16")
    w("L_end:")
    w("  s_endpgm")
    w('.section .rodata,"a"')
    w(".p2align 6")
    w(f".amdhsa_kernel {KNAME}")
    w(f"  .amdhsa_next_free_vgpr {NV}")
    w("  .amdhsa_next_free_sgpr 102")
    w(f"  .amdhsa_accum_offset {(NV+3)//4*4}")
    w("  .amdhsa_group_segment_fixed_size 0")
    w("  .amdhsa_kernarg_size 64")
    w("  .amdhsa_user_sgpr_count 2")
    w("  .amdhsa_user_sgpr_kernarg_segment_ptr 1")
    w("  .amdhsa_system_sgpr_workgroup_id_x 1")
    w(".end_amdhsa_kernel")
    return "\n".join(o) + "\n"


if __name__ == "__main__":
    out = sys.argv[1] if len(sys.argv) > 1 else "standalone__low_rank_proj_linformer__sampling.s"
    kw = {}
    for a in sys.argv[2:]:
        k_, v_ = a.split("=")
        try:
            kw[k_] = int(v_)
        except ValueError:
            kw[k_] = v_.replace("+", " ")
    open(out, "w").write(gen(**kw))
```

```python
import sys

KNAME = "standalone__low_rank_proj_linformer__sampling_kernel"

HEADER = """; Kernarg layout for this problem (64 bytes, ptrs only, base s[0:1]):
"""


def gen(nt=1, stamps=0, stag=1, minlds=84000, hmap=0, fc=1, D=6, maxtry=4096, csleep=4, ssleep=1, cst=1, cld=1, stpol='sc1', ldpol='sc1', gstride=1280, pubstep=2, full=1, lstride=128, S1=16, S2=8, SW=96, phm=5, tlbpf=1, lastbody=1, GS=8, S3=0, SW3=116, xcc=0, opol='', tlog=0, swap=0):
    NW = 4
    o = []
    w = o.append
    NT = " nt" if nt else ""
    OPOL = (" " + opol) if opol else ""

    def stamp(i):
        if stamps:
            w(f"  s_memrealtime s[{64+2*i}:{65+2*i}]")

    HEADB = 4096 * 384
    BLKB = 64 * 384
    NBLK = 64
    JS = 26 * 16
    RS = 8 * JS
    PS = 2 * RS
    NPART = 2 * NW
    KPB = NPART * PS
    KPROW = 400
    PFR = KPB + 8 * KPROW
    CTR = PFR + 512
    LDS = CTR + 32
    LDS = max(LDS, minlds)
    LDS = (LDS + 255) // 256 * 256
    WSOFF = 1 << 20

    vS = [1, 2, 3]
    vA = 4
    vWP, vWQ, vRD = 5, 6, 7
    vKW, vKR, vOUT, vRD2 = 8, 9, 10, 11
    ARAW, ALO, AHI = 12, 16, 20
    T = 24
    QF = 56
    vCL, vCT, vPF, vOne = 80, 81, 82, 83
    ACC = 84
    RING = 148
    vLIM = RING + 96
    vLOG = RING + 97
    NV = RING + 100
    sIter = 101

    def accP(j): return ACC + 4 * j
    def accQ(j): return ACC + 32 + 4 * j
    def vr(b, n=4): return f"v[{b}:{b+n-1}]"

    SN, SA, SQ, SO = 16, 20, 24, 28
    sKb, sVb = 32, 34
    sW, sCur, sOffN, sOffA = 36, 37, 38, 39
    sSelLo, sSelHi = 40, 41
    sMLo, sMHi = 42, 44
    sTmp, sTmp2 = 46, 47
    sExQ = 48
    sG01, sG23 = 50, 52
    sC0, sC1 = 54, 55
    sNxt, sDump, sPi, sStag = 56, 57, 58, 59
    SD = 60
    sLim, sTry, sOff, sSlot, sLast = 96, 97, 98, 99, 100
    sWG = 3

    nthreads = (NW + (1 if fc else 0)) * 64
    w(HEADER.rstrip("\n"))
    w(f"; @launch grid=(256,1,1) block=({nthreads},1,1) lds={LDS}")
    w('.amdgcn_target "amdgcn-amd-amdhsa--gfx950"')
    w(".text")
    w(f".globl {KNAME}")
    w(".p2align 8")
    w(f".type {KNAME},@function")
    w(f"{KNAME}:")
    w("  s_cmp_ge_u32 s2, 256")
    w("  s_cbranch_scc1 L_end")
    stamp(0)
    w("  s_mov_b32 s3, s2")
    if hmap == 1:
        w("  s_lshr_b32 s60, s3, 3")
        w("  s_and_b32 s61, s3, 7")
        w("  s_lshl_b32 s61, s61, 5")
        w("  s_add_u32 s2, s60, s61")
    w("  s_load_dwordx8 s[4:11], s[0:1], 0")
    w("  s_load_dwordx4 s[12:15], s[0:1], 32")
    w("  s_load_dwordx4 s[76:79], s[0:1], 48")
    L, WV, G, C, CC, HF, G16, C16, G3K = T, T+1, T+2, T+3, T+4, T+5, T+6, T+7, T+8
    w(f"  v_and_b32 v{L}, 63, v0")
    w(f"  v_lshrrev_b32 v{WV}, 6, v0")
    w(f"  v_lshrrev_b32 v{G}, 4, v{L}")
    w(f"  v_and_b32 v{C}, 15, v{L}")
    w(f"  v_readfirstlane_b32 s{sW}, v{WV}")
    w(f"  v_mul_u32_u24 v{G3K}, 3072, v{G}")
    w(f"  v_lshlrev_b32 v{C16}, 4, v{C}")
    w(f"  v_mov_b32 v{vCT}, {CTR}")
    w(f"  v_mov_b32 v{vOne}, 1")
    if fc:
        w(f"  s_cmp_eq_u32 s{sW}, {NW}")
        w("  s_cbranch_scc1 L_ctrl")
    w(f"  v_add_u32 v{vS[0]}, v{G3K}, v{C16}")
    w(f"  v_add_u32 v{vS[2]}, {12288+128}, v{vS[0]}")
    w(f"  v_and_b32 v{CC}, 7, v{C}")
    w(f"  v_lshrrev_b32 v{HF}, 3, v{C}")
    w(f"  v_lshlrev_b32 v{T+9}, 4, v{CC}")
    w(f"  v_add_u32 v{T+9}, v{G3K}, v{T+9}")
    w(f"  v_mul_u32_u24 v{T+10}, {12288-256}, v{HF}")
    w(f"  v_add_u32 v{T+9}, v{T+9}, v{T+10}")
    w(f"  v_add_u32 v{vS[1]}, 256, v{T+9}")
    w(f"  v_lshlrev_b32 v{T+9}, 13, v{CC}")
    w(f"  v_lshlrev_b32 v{T+10}, 6, v{HF}")
    w(f"  v_lshlrev_b32 v{G16}, 4, v{G}")
    w(f"  v_add3_u32 v{vA}, v{T+9}, v{T+10}, v{G16}")
    w(f"  s_mul_i32 s{sTmp}, s2, {HEADB}")
    w(f"  s_mul_i32 s{sStag}, s2, {stag}")
    w(f"  s_add_u32 s{sTmp2}, s{sStag}, s{sW}")
    w(f"  s_and_b32 s{sTmp2}, s{sTmp2}, {NBLK-1}")
    w(f"  s_mul_i32 s{sOffN}, s{sTmp2}, {BLKB}")
    w(f"  s_lshl_b32 s{sOffA}, s{sTmp2}, 7")
    w(f"  s_mov_b32 s{SN+2}, {HEADB}")
    w(f"  s_mov_b32 s{SN+3}, 0x00020000")
    w(f"  s_mov_b32 s{SA+2}, 65536")
    w(f"  s_mov_b32 s{SA+3}, 0x00020000")
    w("  s_waitcnt lgkmcnt(0)")
    w(f"  s_add_u32 s{sKb}, s6, s{sTmp}")
    w(f"  s_addc_u32 s{sKb+1}, s7, 0")
    w(f"  s_and_b32 s{sKb+1}, s{sKb+1}, 0xffff")
    w(f"  s_mov_b32 s{SN}, s{sKb}")
    w(f"  s_mov_b32 s{SN+1}, s{sKb+1}")
    w(f"  s_mov_b32 s{SA}, s10")
    w(f"  s_and_b32 s{SA+1}, s11, 0xffff")

    def loads(unit_set, ring_slot, rows=range(8)):
        for i in rows:
            w(f"  buffer_load_dwordx4 {vr(RING + 32*ring_slot + 4*i)}, v{vS[unit_set]}, s[{SN}:{SN+3}], s{sOffN} offen offset:{i*384}{NT}")

    def loadA():
        w(f"  buffer_load_dwordx4 {vr(ARAW)}, v{vA}, s[{SA}:{SA+3}], s{sOffA} offen")

    UNITS = [(1, ARAW, accQ), (0, ALO, accP), (2, AHI, accP)]

    loads(UNITS[0][0], 0)
    loadA()
    loads(UNITS[1][0], 1)
    loads(UNITS[2][0], 2)
    stamp(1)
    w(f"  s_add_u32 s{sVb}, s8, s{sTmp}")
    w(f"  s_addc_u32 s{sVb+1}, s9, 0")
    w(f"  s_and_b32 s{sVb+1}, s{sVb+1}, 0xffff")
    w(f"  s_and_b32 s11, s11, 0xffff")
    w(f"  s_and_b32 s13, s13, 0xffff")
    w(f"  s_mul_i32 s{sTmp2}, s2, 6144")
    w(f"  s_add_u32 s{SQ}, s4, s{sTmp2}")
    w(f"  s_addc_u32 s{SQ+1}, s5, 0")
    w(f"  s_and_b32 s{SQ+1}, s{SQ+1}, 0xffff")
    w(f"  s_mov_b32 s{SQ+2}, 6144")
    w(f"  s_mov_b32 s{SQ+3}, 0x00020000")
    w(f"  s_add_u32 s{SO}, s14, s{sTmp2}")
    w(f"  s_addc_u32 s{SO+1}, s15, 0")
    w(f"  s_and_b32 s{SO+1}, s{SO+1}, 0xffff")
    w(f"  s_mov_b32 s{SO+2}, 6144")
    w(f"  s_mov_b32 s{SO+3}, 0x00020000")
    w(f"  s_mov_b32 s{sSelLo}, 0x05040100")
    w(f"  s_mov_b32 s{sSelHi}, 0x07060302")
    w(f"  s_mov_b32 s{sMLo}, 0x00ff00ff")
    w(f"  s_mov_b32 s{sMLo+1}, 0x00ff00ff")
    w(f"  s_mov_b32 s{sMHi}, 0xff00ff00")
    w(f"  s_mov_b32 s{sMHi+1}, 0xff00ff00")
    w(f"  s_mov_b32 s{sExQ}, 0x00ff00ff")
    w(f"  s_mov_b32 s{sExQ+1}, 0xff00ff00")
    w(f"  s_mov_b32 s{sG01}, -1")
    w(f"  s_mov_b32 s{sG01+1}, 0")
    w(f"  s_mov_b32 s{sG23}, 0")
    w(f"  s_mov_b32 s{sG23+1}, -1")
    w(f"  s_mov_b32 s{sCur}, s{sW}")
    w(f"  s_mov_b32 s{sDump}, 0")
    w(f"  s_mov_b32 s{sOff}, 0")
    if tlog:
        w(f"  s_mov_b32 s{sIter}, 0")
        w(f"  v_mov_b32 v{vLOG}, 0")
    QO = T + 11
    w(f"  v_mul_u32_u24 v{QO}, 384, v{C}")
    w(f"  v_add_u32 v{QO}, v{QO}, v{G16}")
    for t in range(6):
        w(f"  buffer_load_dwordx4 {vr(QF+4*t)}, v{QO}, s[{SQ}:{SQ+3}], 0 offen offset:{t*64}")
    PART, RH, X1, X2, X3 = T+12, T+13, T+14, T+15, T+16
    w(f"  v_lshrrev_b32 v{PART}, 1, v{G}")
    w(f"  v_and_b32 v{RH}, 1, v{G}")
    w(f"  v_lshlrev_b32 v{X1}, 1, v{WV}")
    w(f"  v_add_u32 v{X1}, v{X1}, v{PART}")
    w(f"  v_mul_u32_u24 v{X1}, {PS}, v{X1}")
    w(f"  v_mul_u32_u24 v{X2}, {RS}, v{RH}")
    w(f"  v_add_u32 v{X1}, v{X1}, v{X2}")
    w(f"  v_lshlrev_b32 v{X3}, 7, v{PART}")
    w(f"  v_add3_u32 v{vWP}, v{X1}, v{X3}, v{C16}")
    w(f"  v_mul_u32_u24 v{X3}, 384, v{PART}")
    w(f"  v_add_u32 v{X1}, v{X1}, v{C16}")
    w(f"  v_add_u32 v{X1}, 256, v{X1}")
    w(f"  v_sub_u32 v{vWQ}, v{X1}, v{X3}")
    w(f"  v_lshlrev_b32 v{X1}, 1, v{PART}")
    w(f"  v_add_u32 v{X1}, v{X1}, v{HF}")
    w(f"  v_lshlrev_b32 v{X1}, 4, v{X1}")
    w(f"  v_mul_u32_u24 v{X3}, {JS}, v{CC}")
    w(f"  v_add3_u32 v{vRD}, v{X1}, v{X3}, v{X2}")
    w(f"  v_lshlrev_b32 v{X1}, 4, v{PART}")
    w(f"  v_add_u32 v{X1}, v{X1}, v{C}")
    w(f"  v_lshlrev_b32 v{X1}, 1, v{X1}")
    w(f"  v_mul_u32_u24 v{X3}, {4*KPROW}, v{RH}")
    w(f"  v_add_u32 v{X3}, {KPB}, v{X3}")
    w(f"  v_add_u32 v{vKW}, v{X1}, v{X3}")
    w(f"  v_mul_u32_u24 v{X3}, {KPROW}, v{CC}")
    w(f"  v_add_u32 v{X3}, {KPB}, v{X3}")
    w(f"  v_add_u32 v{vKR}, v{X3}, v{G16}")
    w(f"  v_mul_u32_u24 v{X1}, 384, v{C}")
    w(f"  v_mul_u32_u24 v{X2}, 96, v{WV}")
    w(f"  v_lshlrev_b32 v{X3}, 3, v{G}")
    w(f"  v_add3_u32 v{vOUT}, v{X1}, v{X2}, v{X3}")
    w(f"  v_mul_u32_u24 v{X1}, {RS}, v{RH}")
    w(f"  v_mul_u32_u24 v{X2}, {JS}, v{CC}")
    w(f"  v_lshlrev_b32 v{X3}, 4, v{HF}")
    w(f"  v_add3_u32 v{X1}, v{X1}, v{X2}, v{X3}")
    w(f"  v_mul_u32_u24 v{X2}, {4*PS}, v{PART}")
    w(f"  v_add_u32 v{X1}, v{X1}, v{X2}")
    w(f"  v_add_u32 v{vRD2}, 64, v{X1}")
    w(f"  v_lshlrev_b32 v{X1}, 3, v{L}")
    w(f"  v_add_u32 v{vPF}, {PFR}, v{X1}")

    def init_counters():
        w(f"  v_mov_b32 v{X1}, {NW}")
        w(f"  v_mov_b32 v{X2}, 0")
        w(f"  v_mov_b32 v{X3}, 0")
        w(f"  v_mov_b32 v{X3+1}, 255")
        w(f"  v_mov_b32 v{X3+2}, 0")
        w(f"  v_mov_b32 v{X3+3}, 0")
        w(f"  ds_write_b128 v{vCT}, {vr(X1)}")
        w(f"  ds_write_b64 v{vCT}, {vr(X3+2,2)} offset:16")
        w("  s_waitcnt lgkmcnt(0)")

    if not fc:
        w(f"  s_cmp_lg_u32 s{sW}, 0")
        w("  s_cbranch_scc1 L_noinit")
        init_counters()
        w("L_noinit:")
    for r in range(64):
        w(f"  v_mov_b32 v{ACC+r}, 0")
    w("  s_barrier")
    if stamps:
        w("  s_waitcnt vmcnt(22)")
        stamp(2)

    def body_last():
        for u, (st, areg, accf) in enumerate(UNITS):
            if u == 1:
                w("  s_waitcnt vmcnt(8)")
            if u == 2:
                w("  s_waitcnt vmcnt(0)")
            R = RING + 32 * u
            for dw in range(4):
                for m in range(4):
                    x = R + 4 * (2 * m) + dw
                    y = R + 4 * (2 * m + 1) + dw
                    w(f"  v_perm_b32 v{T + 4*(2*dw) + m}, v{y}, v{x}, s{sSelLo}")
                    w(f"  v_perm_b32 v{T + 4*(2*dw+1) + m}, v{y}, v{x}, s{sSelHi}")
                if dw >= 1:
                    for j in (2*(dw-1), 2*(dw-1)+1):
                        w(f"  v_mfma_f32_16x16x32_bf16 {vr(accf(j))}, {vr(areg)}, {vr(T+4*j)}, {vr(accf(j))}")
            w("  s_nop 1")
            for j in (6, 7):
                w(f"  v_mfma_f32_16x16x32_bf16 {vr(accf(j))}, {vr(areg)}, {vr(T+4*j)}, {vr(accf(j))}")

    def body(first=False):
        extra = 6 if first else 0
        tag = "f" if first else "l"
        w("  s_mov_b64 exec, 1")
        w(f"  ds_add_rtn_u32 v{vCL}, v{vCT}, v{vOne}")
        w("  s_mov_b64 exec, -1")
        if fc:
            w(f"  ds_read_b32 v{vLIM}, v{vCT} offset:12")
        for u, (st, areg, accf) in enumerate(UNITS):
            n_out = (16 if u == 0 else 17) + extra
            w(f"  s_waitcnt vmcnt({n_out})")
            if u == 0:
                if tlog:
                    w("  s_memrealtime s[64:65]")
                w("  s_waitcnt lgkmcnt(0)")
                if tlog:
                    w(f"  s_mov_b32 m0, s{sIter}"); w(f"  v_writelane_b32 v{vLOG}, s64, m0")
                    w(f"  s_add_u32 s{sIter}, s{sIter}, 1")
                w(f"  v_readfirstlane_b32 s{sNxt}, v{vCL}")
                if fc:
                    w(f"  v_readfirstlane_b32 s{sLim}, v{vLIM}")
                for e in range(4):
                    w(f"  v_cndmask_b32 v{ALO+e}, 0, v{ARAW+e}, s[{sMLo}:{sMLo+1}]")
                    w(f"  v_cndmask_b32 v{AHI+e}, 0, v{ARAW+e}, s[{sMHi}:{sMHi+1}]")
                if lastbody and not first:
                    w(f"  s_cmp_ge_u32 s{sNxt}, {2*NBLK}")
                    w("  s_cbranch_scc1 L_last")
                if fc:
                    w(f"  s_cmp_gt_u32 s{sNxt}, s{sLim}")
                    w(f"  s_cbranch_scc1 L_stall_{tag}")
                    w(f"L_cont_{tag}:")
                w(f"  s_cmp_ge_u32 s{sNxt}, {NBLK}")
                w(f"  s_cselect_b32 s{SN}, s{sVb}, s{sKb}")
                w(f"  s_cselect_b32 s{SN+1}, s{sVb+1}, s{sKb+1}")
                w(f"  s_cselect_b32 s{SA}, s12, s10")
                w(f"  s_cselect_b32 s{SA+1}, s13, s11")
                w(f"  s_cmp_ge_u32 s{sNxt}, {2*NBLK}")
                w(f"  s_cselect_b32 s{SN+2}, 0, {HEADB}")
                w(f"  s_cselect_b32 s{SA+2}, 0, 65536")
                w(f"  s_add_u32 s{sTmp}, s{sNxt}, s{sStag}")
                w(f"  s_and_b32 s{sTmp}, s{sTmp}, {NBLK-1}")
                w(f"  s_mul_i32 s{sOffN}, s{sTmp}, {BLKB}")
                w(f"  s_lshl_b32 s{sOffA}, s{sTmp}, 7")
            R = RING + 32 * u
            for m in range(4):
                for dw in range(4):
                    x = R + 4 * (2 * m) + dw
                    y = R + 4 * (2 * m + 1) + dw
                    w(f"  v_perm_b32 v{T + 4*(2*dw) + m}, v{y}, v{x}, s{sSelLo}")
                    w(f"  v_perm_b32 v{T + 4*(2*dw+1) + m}, v{y}, v{x}, s{sSelHi}")
                loads(st, u, rows=(2 * m, 2 * m + 1))
            for j in range(8):
                w(f"  v_mfma_f32_16x16x32_bf16 {vr(accf(j))}, {vr(areg)}, {vr(T+4*j)}, {vr(accf(j))}")
            if u == 0:
                loadA()

    def after_body():
        w(f"  s_mov_b32 s{sCur}, s{sNxt}")
        w(f"  s_cmp_lt_u32 s{sCur}, {NBLK}")
        w("  s_cbranch_scc1 L_loop")
        w(f"  s_cmp_eq_u32 s{sDump}, 0")
        w("  s_cbranch_scc1 L_dumpK")

    body(first=True)
    after_body()
    w("  s_branch L_chk")
    w("L_loop:")
    body()
    after_body()
    w("L_chk:")
    w(f"  s_cmp_lt_u32 s{sCur}, {2*NBLK}")
    w("  s_cbranch_scc1 L_loop")
    w("  s_branch L_tail")

    def dump():
        w("  s_nop 7")
        w("  s_nop 1")
        for j in range(8):
            w(f"  ds_write_b128 v{vWP}, {vr(accP(j))} offset:{j*JS}")
        w(f"  s_mov_b64 exec, s[{sExQ}:{sExQ+1}]")
        for j in range(8):
            w(f"  ds_write_b128 v{vWQ}, {vr(accQ(j))} offset:{j*JS}")
        w("  s_mov_b64 exec, -1")

    if fc:
        for tag in ("f", "l"):
            w(f"L_stall_{tag}:")
            w(f"  s_cmp_ge_u32 s{sNxt}, {2*NBLK}")
            w(f"  s_cbranch_scc1 L_cont_{tag}")
            w(f"  s_cmp_lg_u32 s{sOff}, 0")
            w(f"  s_cbranch_scc1 L_cont_{tag}")
            w(f"  s_mov_b32 s{sTry}, 0")
            w(f"L_st_{tag}:")
            w(f"  s_sleep {ssleep}")
            w(f"  ds_read_b32 v{vLIM}, v{vCT} offset:12")
            w("  s_waitcnt lgkmcnt(0)")
            w(f"  v_readfirstlane_b32 s{sLim}, v{vLIM}")
            w("  s_nop 3")
            w(f"  s_cmp_le_u32 s{sNxt}, s{sLim}")
            w(f"  s_cbranch_scc1 L_cont_{tag}")
            w(f"  s_add_u32 s{sTry}, s{sTry}, 1")
            w(f"  s_cmp_lt_u32 s{sTry}, {maxtry}")
            w(f"  s_cbranch_scc1 L_st_{tag}")
            w(f"  s_mov_b32 s{sOff}, 1")
            w(f"  s_branch L_cont_{tag}")

        w("L_ctrl:")
        init_counters()
        w("  s_barrier")
        w("  s_setprio 3")
        w("  s_mov_b32 s62, s78")
        w("  s_mov_b32 s63, s79")
        if xcc:
            SG = 80
            w(f"  s_mov_b32 s{SG}, s76")
            w(f"  s_and_b32 s{SG+1}, s77, 0xffff")
            w(f"  s_mov_b32 s{SG+2}, 256")
            w(f"  s_mov_b32 s{SG+3}, 0x00020000")
            w("  s_getreg_b32 s84, hwreg(HW_REG_XCC_ID, 0, 4)")
            w("  s_and_b32 s84, s84, 7")
            w("  s_lshl_b32 s85, s84, 2")
            w("  v_mov_b32 v7, 1")
            w("  s_mov_b64 exec, 1")
            w(f"  buffer_atomic_add v7, off, s[{SG}:{SG+3}], s85 sc0")
            w("  s_mov_b64 exec, -1")
        if tlbpf:
            w(f"  s_mul_i32 s{sTmp}, s2, {HEADB}")
            w(f"  s_add_u32 s{SN}, s6, s{sTmp}")
            w(f"  s_addc_u32 s{SN+1}, s7, 0")
            w(f"  s_and_b32 s{SN+1}, s{SN+1}, 0xffff")
            w(f"  s_mov_b32 s{SN+2}, {HEADB}")
            w(f"  s_mov_b32 s{SN+3}, 0x00020000")
            w(f"  s_add_u32 s{SA}, s8, s{sTmp}")
            w(f"  s_addc_u32 s{SA+1}, s9, 0")
            w(f"  s_and_b32 s{SA+1}, s{SA+1}, 0xffff")
            w(f"  s_mov_b32 s{SA+2}, {HEADB}")
            w(f"  s_mov_b32 s{SA+3}, 0x00020000")
            w(f"  v_lshlrev_b32 v12, 18, v{L}")
            w(f"  buffer_load_dword v13, v12, s[{SA}:{SA+3}], 0 offen nt")
            w(f"  buffer_load_dword v14, v12, s[{SN}:{SN+3}], 0 offen nt")
        gsh = GS.bit_length() - 1
        sGrp, sMem, sAll = 86, 87, 88
        if xcc:
            assert GS == 8
            w("  s_waitcnt vmcnt(0)")
            w(f"  v_readfirstlane_b32 s{sGrp}, v7")
            w(f"  s_mov_b32 s{sMem}, s84")
            w(f"  s_mov_b32 s{sAll}, 0")
            w("  s_nop 3")
        else:
            w(f"  s_lshr_b32 s{sGrp}, s{sWG}, {gsh}")
            w(f"  s_and_b32 s{sMem}, s{sWG}, {GS-1}")
            w(f"  s_mov_b32 s{sAll}, 1")
        GSTR = GS*lstride+256
        w(f"  s_min_u32 s{sGrp}, s{sGrp}, 255")
        w(f"  s_mul_i32 s{sTry}, s{sGrp}, {GSTR}")
        w(f"  s_add_u32 s{SD}, s62, {WSOFF}")
        w(f"  s_addc_u32 s{SD+1}, s63, 0")
        w(f"  s_and_b32 s{SD+1}, s{SD+1}, 0xffff")
        if not full:
            w(f"  s_mov_b32 s{SD+2}, 32")
            w(f"  s_mov_b32 s{SD+3}, 0x00020000")
            w(f"  s_and_b32 s{sSlot}, s{sWG}, 7")
            w(f"  s_lshl_b32 s{sSlot}, s{sSlot}, 2")
            w(f"  v_and_b32 v1, 7, v{L}")
            w("  v_lshlrev_b32 v1, 2, v1")
        else:
            w(f"  s_mov_b32 s{SD+2}, {256*GSTR}")
            w(f"  s_mov_b32 s{SD+3}, 0x00020000")
            w(f"  s_mul_i32 s{sSlot}, s{sMem}, {lstride}")
            w(f"  s_add_u32 s{sSlot}, s{sSlot}, s{sTry}")
            w(f"  v_and_b32 v1, 7, v{L}")
            w(f"  v_lshlrev_b32 v6, 4, v1")
            w(f"  v_and_b32 v1, {GS-1}, v{L}")
            w(f"  v_mul_u32_u24 v1, {lstride}, v1")
        w(f"  v_lshrrev_b32 v12, 4, v6")
        w(f"  v_lshlrev_b32 v12, 2, v12")
        w(f"  s_mul_i32 s{sTmp}, s{sGrp}, {phm}")
        w(f"  s_and_b32 s{sTmp}, s{sTmp}, {S1-1}")
        w(f"  s_sub_u32 s{sLast}, {S1}, s{sTmp}")
        w(f"  v_mov_b32 v8, s{sLast}")
        w(f"  v_mov_b32 v9, s{sLast}")
        w(f"  v_mov_b32 v10, s{sLast}")
        w(f"  v_mov_b32 v11, s{sLast}")
        w(f"  s_mov_b64 exec, 255")
        if cst:
            w(f"  buffer_store_dwordx4 v[8:11], v6, s[{SD}:{SD+3}], s{sSlot} offen {stpol}" if not swap else f"  s_mov_b64 exec, 1\n  buffer_atomic_swap v8, off, s[{SD}:{SD+3}], s{sSlot}")
        w("  s_mov_b64 exec, -1")
        w("L_cl:")
        w(f"  ds_read_b32 v2, v{vCT}")
        w("  s_waitcnt lgkmcnt(0)")
        w(f"  v_readfirstlane_b32 s{sNxt}, v2")
        w("  s_nop 3")
        w(f"  s_cmp_ge_u32 s{sNxt}, {2*NBLK}")
        w("  s_cbranch_scc1 L_cfin")
        w(f"  s_cmp_lt_u32 s{sNxt}, s{sLast}")
        w("  s_cbranch_scc1 L_cnopub")
        w(f"  s_cmp_ge_u32 s{sLast}, {SW}")
        w(f"  s_cselect_b32 s{sTmp}, {S2}, {S1}")
        if S3:
            w(f"  s_cmp_ge_u32 s{sLast}, {SW3}")
            w(f"  s_cselect_b32 s{sTmp}, {S3}, s{sTmp}")
        w(f"  s_add_u32 s{sLast}, s{sLast}, s{sTmp}")
        w("L_cpub:")
        w(f"  v_mov_b32 v8, s{sLast}")
        w(f"  v_mov_b32 v9, s{sLast}")
        w(f"  v_mov_b32 v10, s{sLast}")
        w(f"  v_mov_b32 v11, s{sLast}")
        w(f"  s_mov_b64 exec, 255")
        if cst:
            w(f"  buffer_store_dwordx4 v[8:11], v6, s[{SD}:{SD+3}], s{sSlot} offen {stpol}" if not swap else f"  s_mov_b64 exec, 1\n  buffer_atomic_swap v8, off, s[{SD}:{SD+3}], s{sSlot}")
        w("  s_mov_b64 exec, -1")
        w("L_cnopub:")
        w(f"  buffer_load_dword v4, v1, s[{SD}:{SD+3}], s{sTry} offen {ldpol}")
        if xcc:
            w(f"  s_cmp_lg_u32 s{sAll}, 0")
            w("  s_cbranch_scc1 L_call")
            w(f"  buffer_load_dword v13, v12, s[{SG}:{SG+3}], 0 offen sc1")
            w("  s_waitcnt vmcnt(0)")
            w(f"  v_cmp_lt_u32 vcc, s{sGrp}, v13")
            w("  v_mov_b32 v14, 255")
            w("  s_nop 0")
            w("  v_cndmask_b32 v4, v14, v4, vcc")
            w("  s_cmp_eq_u64 vcc, -1")
            w(f"  s_cselect_b32 s{sAll}, 1, 0")
            w("L_call:")
        w("  s_waitcnt vmcnt(0)")
        if GS > 8:
            for sh in (1, 2, 4, 8):
                w("  s_nop 1")
                w(f"  v_min_u32_dpp v4, v4, v4 row_ror:{sh} row_mask:0xf bank_mask:0xf")
            w("  s_nop 1")
            nrow = GS // 16
            for i in range(nrow):
                w(f"  v_readlane_b32 s{64+i}, v4, {16*i}")
            w("  s_nop 3")
            for i in range(1, nrow):
                w(f"  s_min_u32 s64, s64, s{64+i}")
        else:
            for i in range(8):
                w(f"  v_readlane_b32 s{64+i}, v4, {i}")
            w("  s_nop 3")
            for i in range(1, 8):
                w(f"  s_min_u32 s64, s64, s{64+i}")
        w(f"  s_min_u32 s64, s64, 250")
        w(f"  s_add_u32 s64, s64, {D}")
        w("  v_mov_b32 v5, s64")
        w("  s_mov_b64 exec, 1")
        w(f"  ds_write_b32 v{vCT}, v5 offset:12")
        w("  s_mov_b64 exec, -1")
        if csleep:
            w(f"  s_sleep {csleep}")
        w("  s_branch L_cl")
        w("L_cfin:")
        w("  v_mov_b32 v8, 255")
        w("  v_mov_b32 v9, 255")
        w("  v_mov_b32 v10, 255")
        w("  v_mov_b32 v11, 255")
        w(f"  s_mov_b64 exec, 255")
        if cst:
            w(f"  buffer_store_dwordx4 v[8:11], v6, s[{SD}:{SD+3}], s{sSlot} offen {stpol}" if not swap else f"  s_mov_b64 exec, 1\n  buffer_atomic_swap v8, off, s[{SD}:{SD+3}], s{sSlot}")
        w("L_cexit:")
        w("  v_mov_b32 v5, 255")
        w("  s_mov_b64 exec, 1")
        w(f"  ds_write_b32 v{vCT}, v5 offset:12")
        w("  s_endpgm")

    def reduce_partials(dst, va):
        for p in range(8):
            w(f"  ds_read_b128 {vr(T+4*p)}, v{va} offset:{p*PS}")
        for p in range(8):
            w(f"  s_waitcnt lgkmcnt({7-p})")
            for e in range(4):
                if p == 0:
                    w(f"  v_mov_b32 v{dst+e}, v{T+4*p+e}")
                else:
                    w(f"  v_add_f32 v{dst+e}, v{dst+e}, v{T+4*p+e}")

    w("L_dumpK:")
    stamp(3)
    w(f"  s_mov_b32 s{sDump}, 1")
    dump()
    w("  s_mov_b64 exec, 1")
    w(f"  ds_add_rtn_u32 v{vCL}, v{vCT}, v{vOne} offset:4")
    w("  s_mov_b64 exec, -1")
    for r in range(64):
        w(f"  v_mov_b32 v{ACC+r}, 0")
    w("  s_waitcnt lgkmcnt(0)")
    w(f"  v_readfirstlane_b32 s{sTmp}, v{vCL}")
    w("  s_nop 3")
    w(f"  s_cmp_lg_u32 s{sTmp}, {NW-1}")
    w("  s_cbranch_scc1 L_chk")
    SUM = ALO
    VA, VK = AHI, AHI+2
    w(f"  v_mov_b32 v{VA}, v{vRD}")
    w(f"  v_mov_b32 v{VK}, v{vKW}")
    w(f"  s_mov_b32 s{sPi}, 0")
    w("L_kred:")
    reduce_partials(SUM, VA)
    w(f"  v_cvt_pk_bf16_f32 v{T}, v{SUM}, v{SUM+1}")
    w(f"  v_cvt_pk_bf16_f32 v{T+1}, v{SUM+2}, v{SUM+3}")
    w(f"  ds_write_b16 v{VK}, v{T} offset:0")
    w(f"  ds_write_b16_d16_hi v{VK}, v{T} offset:{KPROW}")
    w(f"  ds_write_b16 v{VK}, v{T+1} offset:{2*KPROW}")
    w(f"  ds_write_b16_d16_hi v{VK}, v{T+1} offset:{3*KPROW}")
    w(f"  v_add_u32 v{VA}, 64, v{VA}")
    w(f"  v_add_u32 v{VK}, 64, v{VK}")
    w(f"  s_add_u32 s{sPi}, s{sPi}, 1")
    w(f"  s_cmp_lt_u32 s{sPi}, 6")
    w("  s_waitcnt lgkmcnt(0)")
    w("  s_cbranch_scc1 L_kred")
    S = T + 24
    for e in range(4):
        w(f"  v_mov_b32 v{S+e}, 0")
    for t in range(6):
        w(f"  ds_read_b128 {vr(T+4*t)}, v{vKR} offset:{t*64}")
    w("  s_waitcnt vmcnt(25)")
    for t in range(6):
        w(f"  s_waitcnt lgkmcnt({5-t})")
        w(f"  v_mfma_f32_16x16x32_bf16 {vr(S)}, {vr(T+4*t)}, {vr(QF+4*t)}, {vr(S)}")
    w("  s_nop 7")
    w("  s_nop 1")
    w(f"  s_mov_b32 s{sC0}, 0x3d93cd3a")
    w(f"  s_mov_b32 s{sC1}, 0x3fb8aa3b")
    X = T
    for rep in range(2):
        w(f"  v_cvt_pk_bf16_f32 v{X}, v{S}, v{S+1}")
        w(f"  v_cvt_pk_bf16_f32 v{X+1}, v{S+2}, v{S+3}")
        w(f"  v_lshlrev_b32 v{S}, 16, v{X}")
        w(f"  v_and_b32 v{S+1}, 0xffff0000, v{X}")
        w(f"  v_lshlrev_b32 v{S+2}, 16, v{X+1}")
        w(f"  v_and_b32 v{S+3}, 0xffff0000, v{X+1}")
        if rep == 0:
            for e in range(4):
                w(f"  v_mul_f32 v{S+e}, s{sC0}, v{S+e}")
    w(f"  v_max_f32 v{X}, v{S}, v{S+1}")
    w(f"  v_max3_f32 v{X}, v{X}, v{S+2}, v{S+3}")
    w(f"  ds_swizzle_b32 v{X+1}, v{X} offset:0x401F")
    w("  s_waitcnt lgkmcnt(0)")
    w(f"  v_max_f32 v{X}, v{X}, v{X+1}")
    for e in range(4):
        w(f"  v_sub_f32 v{S+e}, v{S+e}, v{X}")
    for e in range(4):
        w(f"  v_mul_f32 v{S+e}, s{sC1}, v{S+e}")
    for e in range(4):
        w(f"  v_exp_f32 v{S+e}, v{S+e}")
    w("  s_nop 0")
    w(f"  v_add_f32 v{X}, v{S}, v{S+1}")
    w(f"  v_add_f32 v{X+1}, v{S+2}, v{S+3}")
    w(f"  v_add_f32 v{X}, v{X}, v{X+1}")
    w(f"  ds_swizzle_b32 v{X+1}, v{X} offset:0x401F")
    w("  s_waitcnt lgkmcnt(0)")
    w(f"  v_add_f32 v{X}, v{X}, v{X+1}")
    w(f"  v_rcp_f32 v{X}, v{X}")
    w("  s_nop 0")
    for e in range(4):
        w(f"  v_mul_f32 v{S+e}, v{S+e}, v{X}")
    w(f"  v_cvt_pk_bf16_f32 v{X}, v{S}, v{S+1}")
    w(f"  v_cvt_pk_bf16_f32 v{X+1}, v{S+2}, v{S+3}")
    w(f"  ds_write_b64 v{vPF}, {vr(X,2)}")
    w("  s_mov_b64 exec, 1")
    w(f"  ds_write_b32 v{vCT}, v{vOne} offset:8")
    w("  s_mov_b64 exec, -1")
    w("  s_waitcnt lgkmcnt(0)")
    w("  s_branch L_chk")

    if lastbody:
        w("L_last:")
        body_last()
        w(f"  s_mov_b32 s{sCur}, s{sNxt}")
        w(f"  s_cmp_eq_u32 s{sDump}, 0")
        w("  s_cbranch_scc1 L_dumpK")
    w("L_tail:")
    stamp(4)
    w("L_spin:")
    w(f"  ds_read_b32 v{vCL}, v{vCT} offset:8")
    w("  s_waitcnt lgkmcnt(0)")
    w(f"  v_readfirstlane_b32 s{sTmp}, v{vCL}")
    w("  s_nop 3")
    w(f"  s_cmp_lg_u32 s{sTmp}, 0")
    w("  s_cbranch_scc1 L_go")
    w("  s_sleep 1")
    w("  s_branch L_spin")
    w("L_go:")
    dump()
    PB = QF
    w(f"  ds_read_b64 {vr(PB,2)}, v{vPF}")
    w("  s_mov_b64 exec, 1")
    w(f"  ds_add_u32 v{vCT}, v{vOne} offset:16")
    w("  s_mov_b64 exec, -1")
    w(f"  s_mul_i32 s{sTmp}, s{sW}, 96")
    w(f"  v_add_u32 v{vRD}, s{sTmp}, v{vRD}")
    w(f"  v_add_u32 v{vRD2}, s{sTmp}, v{vRD2}")
    w("L_vspin:")
    w(f"  ds_read_b32 v{vCL}, v{vCT} offset:16")
    w("  s_waitcnt lgkmcnt(0)")
    w(f"  v_readfirstlane_b32 s{sTmp}, v{vCL}")
    w("  s_nop 3")
    w(f"  s_cmp_lt_u32 s{sTmp}, {NW}")
    w("  s_cbranch_scc1 L_vspin")
    BA = ACC
    BB = ACC + 32
    for p in range(8):
        w(f"  ds_read_b128 {vr(BA+4*p)}, v{vRD} offset:{p*PS}")
    for p in range(4):
        w(f"  ds_read_b128 {vr(BB+4*p)}, v{vRD2} offset:{p*PS}")
    w(f"  v_cndmask_b32 v{PB+2}, 0, v{PB}, s[{sG01}:{sG01+1}]")
    w(f"  v_cndmask_b32 v{PB+3}, 0, v{PB+1}, s[{sG01}:{sG01+1}]")
    w(f"  v_cndmask_b32 v{PB+4}, 0, v{PB}, s[{sG23}:{sG23+1}]")
    w(f"  v_cndmask_b32 v{PB+5}, 0, v{PB+1}, s[{sG23}:{sG23+1}]")
    for p in range(1, 8):
        w(f"  s_waitcnt lgkmcnt({11-p})")
        for e in range(4):
            w(f"  v_add_f32 v{BA+e}, v{BA+e}, v{BA+4*p+e}")
    Dd = T
    w(f"  v_cvt_pk_bf16_f32 v{Dd}, v{BA}, v{BA+1}")
    w(f"  v_cvt_pk_bf16_f32 v{Dd+1}, v{BA+2}, v{BA+3}")
    for p in range(1, 4):
        w(f"  s_waitcnt lgkmcnt({3-p})")
        for e in range(4):
            w(f"  v_add_f32 v{BB+e}, v{BB+e}, v{BB+4*p+e}")
    w(f"  v_mfma_f32_16x16x16_bf16 {vr(Dd+8)}, {vr(Dd,2)}, {vr(PB+2,2)}, 0")
    w(f"  v_mfma_f32_16x16x16_bf16 {vr(Dd+12)}, {vr(Dd,2)}, {vr(PB+4,2)}, 0")
    for e in range(4):
        w(f"  v_mov_b32 v{BB+4+e}, v{BB+e}")
    w("  s_nop 1")
    for e in range(4):
        w(f"  v_permlane32_swap_b32 v{BB+e}, v{BB+4+e}")
    w("  s_nop 1")
    for e in range(4):
        w(f"  v_add_f32 v{BB+e}, v{BB+e}, v{BB+4+e}")
    w(f"  v_cvt_pk_bf16_f32 v{Dd+2}, v{BB}, v{BB+1}")
    w(f"  v_cvt_pk_bf16_f32 v{Dd+3}, v{BB+2}, v{BB+3}")
    w(f"  v_cvt_pk_bf16_f32 v{Dd+20}, v{Dd+8}, v{Dd+9}")
    w(f"  v_cvt_pk_bf16_f32 v{Dd+21}, v{Dd+10}, v{Dd+11}")
    w(f"  v_mfma_f32_16x16x16_bf16 {vr(Dd+16)}, {vr(Dd+2,2)}, {vr(PB+2,2)}, 0")
    w(f"  v_cvt_pk_bf16_f32 v{Dd+22}, v{Dd+12}, v{Dd+13}")
    w(f"  v_cvt_pk_bf16_f32 v{Dd+23}, v{Dd+14}, v{Dd+15}")
    w(f"  buffer_store_dwordx2 {vr(Dd+20,2)}, v{vOUT}, s[{SO}:{SO+3}], 0 offen{OPOL}")
    w(f"  buffer_store_dwordx2 {vr(Dd+22,2)}, v{vOUT}, s[{SO}:{SO+3}], 0 offen offset:32{OPOL}")
    w("  s_nop 7")
    w(f"  v_cvt_pk_bf16_f32 v{Dd+24}, v{Dd+16}, v{Dd+17}")
    w(f"  v_cvt_pk_bf16_f32 v{Dd+25}, v{Dd+18}, v{Dd+19}")
    w(f"  buffer_store_dwordx2 {vr(Dd+24,2)}, v{vOUT}, s[{SO}:{SO+3}], 0 offen offset:64{OPOL}")
    if stamps:
        w("  s_waitcnt vmcnt(0)")
        stamp(5)
        w("  s_waitcnt lgkmcnt(0)")
        w(f"  s_mul_i32 s92, s3, {NW}")
        w(f"  s_add_u32 s92, s92, s{sW}")
        w("  s_lshl_b32 s92, s92, 5")
        w("  s_add_u32 s88, s78, s92")
        w("  s_addc_u32 s89, s79, 0")
        w("  s_and_b32 s89, s89, 0xffff")
        w("  s_mov_b32 s90, 32")
        w("  s_mov_b32 s91, 0x00020000")
        for i in range(6):
            w(f"  v_mov_b32 v{ACC+i}, s{64+2*i}")
        w(f"  v_mov_b32 v{ACC+8}, 0")
        w("  s_mov_b64 exec, 1")
        w(f"  buffer_store_dwordx4 {vr(ACC)}, v{ACC+8}, s[88:91], 0 offen")
        w(f"  buffer_store_dwordx2 {vr(ACC+4,2)}, v{ACC+8}, s[88:91], 0 offen offset:16")
    if tlog:
        w("  s_memrealtime s[64:65]")
        w("  s_waitcnt lgkmcnt(0)")
        w(f"  s_mov_b32 m0, s{sIter}"); w(f"  v_writelane_b32 v{vLOG}, s64, m0")
        w(f"  s_mul_i32 s92, s3, {NW}")
        w(f"  s_add_u32 s92, s92, s{sW}")
        w("  s_lshl_b32 s92, s92, 8")
        w("  s_add_u32 s88, s78, s92")
        w("  s_addc_u32 s89, s79, 0")
        w("  s_and_b32 s89, s89, 0xffff")
        w("  s_mov_b32 s90, 256")
        w("  s_mov_b32 s91, 0x00020000")
        w("  v_and_b32 v0, 63, v0")
        w("  v_lshlrev_b32 v0, 2, v0")
        w(f"  buffer_store_dword v{vLOG}, v0, s[88:91], 0 offen")
    w("L_end:")
    w("  s_endpgm")
    w('.section .rodata,"a"')
    w(".p2align 6")
    w(f".amdhsa_kernel {KNAME}")
    w(f"  .amdhsa_next_free_vgpr {NV}")
    w("  .amdhsa_next_free_sgpr 102")
    w(f"  .amdhsa_accum_offset {(NV+3)//4*4}")
    w("  .amdhsa_group_segment_fixed_size 0")
    w("  .amdhsa_kernarg_size 64")
    w("  .amdhsa_user_sgpr_count 2")
    w("  .amdhsa_user_sgpr_kernarg_segment_ptr 1")
    w("  .amdhsa_system_sgpr_workgroup_id_x 1")
    w(".end_amdhsa_kernel")
    return "\n".join(o) + "\n"


if __name__ == "__main__":
    out = sys.argv[1] if len(sys.argv) > 1 else "standalone__low_rank_proj_linformer__sampling.s"
    kw = {}
    for a in sys.argv[2:]:
        k_, v_ = a.split("=")
        try:
            kw[k_] = int(v_)
        except ValueError:
            kw[k_] = v_.replace("+", " ")
    open(out, "w").write(gen(**kw))
```

```python
import sys

KNAME = "standalone__low_rank_proj_linformer__sampling_kernel"

HEADER = """; Kernarg layout for this problem (64 bytes, ptrs only, base s[0:1]):
"""


def gen(nt=1, stamps=0, stag=1, minlds=84000, hmap=0, fc=1, D=6, maxtry=4096, csleep=4, ssleep=1, cst=1, cld=1, stpol='sc1', ldpol='sc1', gstride=1280, pubstep=2, full=1, lstride=128, S1=16, S2=8, SW=96, phm=5, tlbpf=1, lastbody=1, GS=8, S3=0, SW3=116, xcc=0, opol='', tlog=0, swap=0):
    NW = 4
    o = []
    w = o.append
    NT = " nt" if nt else ""
    OPOL = (" " + opol) if opol else ""

    def stamp(i):
        if stamps:
            w(f"  s_memrealtime s[{64+2*i}:{65+2*i}]")

    HEADB = 4096 * 384
    BLKB = 64 * 384
    NBLK = 64
    JS = 26 * 16
    RS = 8 * JS
    PS = 2 * RS
    NPART = 2 * NW
    KPB = NPART * PS
    KPROW = 400
    PFR = KPB + 8 * KPROW
    CTR = PFR + 512
    LDS = CTR + 32
    LDS = max(LDS, minlds)
    LDS = (LDS + 255) // 256 * 256
    WSOFF = 1 << 20

    vS = [1, 2, 3]
    vA = 4
    vWP, vWQ, vRD = 5, 6, 7
    vKW, vKR, vOUT, vRD2 = 8, 9, 10, 11
    ARAW, ALO, AHI = 12, 16, 20
    T = 24
    QF = 56
    vCL, vCT, vPF, vOne = 80, 81, 82, 83
    ACC = 84
    RING = 148
    vLIM = RING + 96
    vLOG = RING + 97
    NV = RING + 100
    sIter = 101

    def accP(j): return ACC + 4 * j
    def accQ(j): return ACC + 32 + 4 * j
    def vr(b, n=4): return f"v[{b}:{b+n-1}]"

    SN, SA, SQ, SO = 16, 20, 24, 28
    sKb, sVb = 32, 34
    sW, sCur, sOffN, sOffA = 36, 37, 38, 39
    sSelLo, sSelHi = 40, 41
    sMLo, sMHi = 42, 44
    sTmp, sTmp2 = 46, 47
    sExQ = 48
    sG01, sG23 = 50, 52
    sC0, sC1 = 54, 55
    sNxt, sDump, sPi, sStag = 56, 57, 58, 59
    SD = 60
    sLim, sTry, sOff, sSlot, sLast = 96, 97, 98, 99, 100
    sWG = 3

    nthreads = (NW + (1 if fc else 0)) * 64
    w(HEADER.rstrip("\n"))
    w(f"; @launch grid=(256,1,1) block=({nthreads},1,1) lds={LDS}")
    w('.amdgcn_target "amdgcn-amd-amdhsa--gfx950"')
    w(".text")
    w(f".globl {KNAME}")
    w(".p2align 8")
    w(f".type {KNAME},@function")
    w(f"{KNAME}:")
    w("  s_cmp_ge_u32 s2, 256")
    w("  s_cbranch_scc1 L_end")
    stamp(0)
    w("  s_mov_b32 s3, s2")
    if hmap == 1:
        w("  s_lshr_b32 s60, s3, 3")
        w("  s_and_b32 s61, s3, 7")
        w("  s_lshl_b32 s61, s61, 5")
        w("  s_add_u32 s2, s60, s61")
    w("  s_load_dwordx8 s[4:11], s[0:1], 0")
    w("  s_load_dwordx4 s[12:15], s[0:1], 32")
    w("  s_load_dwordx4 s[76:79], s[0:1], 48")
    L, WV, G, C, CC, HF, G16, C16, G3K = T, T+1, T+2, T+3, T+4, T+5, T+6, T+7, T+8
    w(f"  v_and_b32 v{L}, 63, v0")
    w(f"  v_lshrrev_b32 v{WV}, 6, v0")
    w(f"  v_lshrrev_b32 v{G}, 4, v{L}")
    w(f"  v_and_b32 v{C}, 15, v{L}")
    w(f"  v_readfirstlane_b32 s{sW}, v{WV}")
    w(f"  v_mul_u32_u24 v{G3K}, 3072, v{G}")
    w(f"  v_lshlrev_b32 v{C16}, 4, v{C}")
    w(f"  v_mov_b32 v{vCT}, {CTR}")
    w(f"  v_mov_b32 v{vOne}, 1")
    if fc:
        w(f"  s_cmp_eq_u32 s{sW}, {NW}")
        w("  s_cbranch_scc1 L_ctrl")
    w(f"  v_add_u32 v{vS[0]}, v{G3K}, v{C16}")
    w(f"  v_add_u32 v{vS[2]}, {12288+128}, v{vS[0]}")
    w(f"  v_and_b32 v{CC}, 7, v{C}")
    w(f"  v_lshrrev_b32 v{HF}, 3, v{C}")
    w(f"  v_lshlrev_b32 v{T+9}, 4, v{CC}")
    w(f"  v_add_u32 v{T+9}, v{G3K}, v{T+9}")
    w(f"  v_mul_u32_u24 v{T+10}, {12288-256}, v{HF}")
    w(f"  v_add_u32 v{T+9}, v{T+9}, v{T+10}")
    w(f"  v_add_u32 v{vS[1]}, 256, v{T+9}")
    w(f"  v_lshlrev_b32 v{T+9}, 13, v{CC}")
    w(f"  v_lshlrev_b32 v{T+10}, 6, v{HF}")
    w(f"  v_lshlrev_b32 v{G16}, 4, v{G}")
    w(f"  v_add3_u32 v{vA}, v{T+9}, v{T+10}, v{G16}")
    w(f"  s_mul_i32 s{sTmp}, s2, {HEADB}")
    w(f"  s_mul_i32 s{sStag}, s2, {stag}")
    w(f"  s_add_u32 s{sTmp2}, s{sStag}, s{sW}")
    w(f"  s_and_b32 s{sTmp2}, s{sTmp2}, {NBLK-1}")
    w(f"  s_mul_i32 s{sOffN}, s{sTmp2}, {BLKB}")
    w(f"  s_lshl_b32 s{sOffA}, s{sTmp2}, 7")
    w(f"  s_mov_b32 s{SN+2}, {HEADB}")
    w(f"  s_mov_b32 s{SN+3}, 0x00020000")
    w(f"  s_mov_b32 s{SA+2}, 65536")
    w(f"  s_mov_b32 s{SA+3}, 0x00020000")
    w("  s_waitcnt lgkmcnt(0)")
    w(f"  s_add_u32 s{sKb}, s6, s{sTmp}")
    w(f"  s_addc_u32 s{sKb+1}, s7, 0")
    w(f"  s_and_b32 s{sKb+1}, s{sKb+1}, 0xffff")
    w(f"  s_mov_b32 s{SN}, s{sKb}")
    w(f"  s_mov_b32 s{SN+1}, s{sKb+1}")
    w(f"  s_mov_b32 s{SA}, s10")
    w(f"  s_and_b32 s{SA+1}, s11, 0xffff")

    def loads(unit_set, ring_slot, rows=range(8)):
        for i in rows:
            w(f"  buffer_load_dwordx4 {vr(RING + 32*ring_slot + 4*i)}, v{vS[unit_set]}, s[{SN}:{SN+3}], s{sOffN} offen offset:{i*384}{NT}")

    def loadA():
        w(f"  buffer_load_dwordx4 {vr(ARAW)}, v{vA}, s[{SA}:{SA+3}], s{sOffA} offen")

    UNITS = [(1, ARAW, accQ), (0, ALO, accP), (2, AHI, accP)]

    loads(UNITS[0][0], 0)
    loadA()
    loads(UNITS[1][0], 1)
    loads(UNITS[2][0], 2)
    stamp(1)
    w(f"  s_add_u32 s{sVb}, s8, s{sTmp}")
    w(f"  s_addc_u32 s{sVb+1}, s9, 0")
    w(f"  s_and_b32 s{sVb+1}, s{sVb+1}, 0xffff")
    w(f"  s_and_b32 s11, s11, 0xffff")
    w(f"  s_and_b32 s13, s13, 0xffff")
    w(f"  s_mul_i32 s{sTmp2}, s2, 6144")
    w(f"  s_add_u32 s{SQ}, s4, s{sTmp2}")
    w(f"  s_addc_u32 s{SQ+1}, s5, 0")
    w(f"  s_and_b32 s{SQ+1}, s{SQ+1}, 0xffff")
    w(f"  s_mov_b32 s{SQ+2}, 6144")
    w(f"  s_mov_b32 s{SQ+3}, 0x00020000")
    w(f"  s_add_u32 s{SO}, s14, s{sTmp2}")
    w(f"  s_addc_u32 s{SO+1}, s15, 0")
    w(f"  s_and_b32 s{SO+1}, s{SO+1}, 0xffff")
    w(f"  s_mov_b32 s{SO+2}, 6144")
    w(f"  s_mov_b32 s{SO+3}, 0x00020000")
    w(f"  s_mov_b32 s{sSelLo}, 0x05040100")
    w(f"  s_mov_b32 s{sSelHi}, 0x07060302")
    w(f"  s_mov_b32 s{sMLo}, 0x00ff00ff")
    w(f"  s_mov_b32 s{sMLo+1}, 0x00ff00ff")
    w(f"  s_mov_b32 s{sMHi}, 0xff00ff00")
    w(f"  s_mov_b32 s{sMHi+1}, 0xff00ff00")
    w(f"  s_mov_b32 s{sExQ}, 0x00ff00ff")
    w(f"  s_mov_b32 s{sExQ+1}, 0xff00ff00")
    w(f"  s_mov_b32 s{sG01}, -1")
    w(f"  s_mov_b32 s{sG01+1}, 0")
    w(f"  s_mov_b32 s{sG23}, 0")
    w(f"  s_mov_b32 s{sG23+1}, -1")
    w(f"  s_mov_b32 s{sCur}, s{sW}")
    w(f"  s_mov_b32 s{sDump}, 0")
    w(f"  s_mov_b32 s{sOff}, 0")
    if tlog:
        w(f"  s_mov_b32 s{sIter}, 0")
        w(f"  v_mov_b32 v{vLOG}, 0")
    QO = T + 11
    w(f"  v_mul_u32_u24 v{QO}, 384, v{C}")
    w(f"  v_add_u32 v{QO}, v{QO}, v{G16}")
    for t in range(6):
        w(f"  buffer_load_dwordx4 {vr(QF+4*t)}, v{QO}, s[{SQ}:{SQ+3}], 0 offen offset:{t*64}")
    PART, RH, X1, X2, X3 = T+12, T+13, T+14, T+15, T+16
    w(f"  v_lshrrev_b32 v{PART}, 1, v{G}")
    w(f"  v_and_b32 v{RH}, 1, v{G}")
    w(f"  v_lshlrev_b32 v{X1}, 1, v{WV}")
    w(f"  v_add_u32 v{X1}, v{X1}, v{PART}")
    w(f"  v_mul_u32_u24 v{X1}, {PS}, v{X1}")
    w(f"  v_mul_u32_u24 v{X2}, {RS}, v{RH}")
    w(f"  v_add_u32 v{X1}, v{X1}, v{X2}")
    w(f"  v_lshlrev_b32 v{X3}, 7, v{PART}")
    w(f"  v_add3_u32 v{vWP}, v{X1}, v{X3}, v{C16}")
    w(f"  v_mul_u32_u24 v{X3}, 384, v{PART}")
    w(f"  v_add_u32 v{X1}, v{X1}, v{C16}")
    w(f"  v_add_u32 v{X1}, 256, v{X1}")
    w(f"  v_sub_u32 v{vWQ}, v{X1}, v{X3}")
    w(f"  v_lshlrev_b32 v{X1}, 1, v{PART}")
    w(f"  v_add_u32 v{X1}, v{X1}, v{HF}")
    w(f"  v_lshlrev_b32 v{X1}, 4, v{X1}")
    w(f"  v_mul_u32_u24 v{X3}, {JS}, v{CC}")
    w(f"  v_add3_u32 v{vRD}, v{X1}, v{X3}, v{X2}")
    w(f"  v_lshlrev_b32 v{X1}, 4, v{PART}")
    w(f"  v_add_u32 v{X1}, v{X1}, v{C}")
    w(f"  v_lshlrev_b32 v{X1}, 1, v{X1}")
    w(f"  v_mul_u32_u24 v{X3}, {4*KPROW}, v{RH}")
    w(f"  v_add_u32 v{X3}, {KPB}, v{X3}")
    w(f"  v_add_u32 v{vKW}, v{X1}, v{X3}")
    w(f"  v_mul_u32_u24 v{X3}, {KPROW}, v{CC}")
    w(f"  v_add_u32 v{X3}, {KPB}, v{X3}")
    w(f"  v_add_u32 v{vKR}, v{X3}, v{G16}")
    w(f"  v_mul_u32_u24 v{X1}, 384, v{C}")
    w(f"  v_mul_u32_u24 v{X2}, 96, v{WV}")
    w(f"  v_lshlrev_b32 v{X3}, 3, v{G}")
    w(f"  v_add3_u32 v{vOUT}, v{X1}, v{X2}, v{X3}")
    w(f"  v_mul_u32_u24 v{X1}, {RS}, v{RH}")
    w(f"  v_mul_u32_u24 v{X2}, {JS}, v{CC}")
    w(f"  v_lshlrev_b32 v{X3}, 4, v{HF}")
    w(f"  v_add3_u32 v{X1}, v{X1}, v{X2}, v{X3}")
    w(f"  v_mul_u32_u24 v{X2}, {4*PS}, v{PART}")
    w(f"  v_add_u32 v{X1}, v{X1}, v{X2}")
    w(f"  v_add_u32 v{vRD2}, 64, v{X1}")
    w(f"  v_lshlrev_b32 v{X1}, 3, v{L}")
    w(f"  v_add_u32 v{vPF}, {PFR}, v{X1}")

    def init_counters():
        w(f"  v_mov_b32 v{X1}, {NW}")
        w(f"  v_mov_b32 v{X2}, 0")
        w(f"  v_mov_b32 v{X3}, 0")
        w(f"  v_mov_b32 v{X3+1}, 255")
        w(f"  v_mov_b32 v{X3+2}, 0")
        w(f"  v_mov_b32 v{X3+3}, 0")
        w(f"  ds_write_b128 v{vCT}, {vr(X1)}")
        w(f"  ds_write_b64 v{vCT}, {vr(X3+2,2)} offset:16")
        w("  s_waitcnt lgkmcnt(0)")

    if not fc:
        w(f"  s_cmp_lg_u32 s{sW}, 0")
        w("  s_cbranch_scc1 L_noinit")
        init_counters()
        w("L_noinit:")
    for r in range(64):
        w(f"  v_mov_b32 v{ACC+r}, 0")
    w("  s_barrier")
    if stamps:
        w("  s_waitcnt vmcnt(22)")
        stamp(2)

    def body_last():
        for u, (st, areg, accf) in enumerate(UNITS):
            if u == 1:
                w("  s_waitcnt vmcnt(8)")
            if u == 2:
                w("  s_waitcnt vmcnt(0)")
            R = RING + 32 * u
            for dw in range(4):
                for m in range(4):
                    x = R + 4 * (2 * m) + dw
                    y = R + 4 * (2 * m + 1) + dw
                    w(f"  v_perm_b32 v{T + 4*(2*dw) + m}, v{y}, v{x}, s{sSelLo}")
                    w(f"  v_perm_b32 v{T + 4*(2*dw+1) + m}, v{y}, v{x}, s{sSelHi}")
                if dw >= 1:
                    for j in (2*(dw-1), 2*(dw-1)+1):
                        w(f"  v_mfma_f32_16x16x32_bf16 {vr(accf(j))}, {vr(areg)}, {vr(T+4*j)}, {vr(accf(j))}")
            w("  s_nop 1")
            for j in (6, 7):
                w(f"  v_mfma_f32_16x16x32_bf16 {vr(accf(j))}, {vr(areg)}, {vr(T+4*j)}, {vr(accf(j))}")

    def body(first=False):
        extra = 6 if first else 0
        tag = "f" if first else "l"
        w("  s_mov_b64 exec, 1")
        w(f"  ds_add_rtn_u32 v{vCL}, v{vCT}, v{vOne}")
        w("  s_mov_b64 exec, -1")
        if fc:
            w(f"  ds_read_b32 v{vLIM}, v{vCT} offset:12")
        for u, (st, areg, accf) in enumerate(UNITS):
            n_out = (16 if u == 0 else 17) + extra
            w(f"  s_waitcnt vmcnt({n_out})")
            if u == 0:
                if tlog:
                    w("  s_memrealtime s[64:65]")
                w("  s_waitcnt lgkmcnt(0)")
                if tlog:
                    w(f"  s_mov_b32 m0, s{sIter}"); w(f"  v_writelane_b32 v{vLOG}, s64, m0")
                    w(f"  s_add_u32 s{sIter}, s{sIter}, 1")
                w(f"  v_readfirstlane_b32 s{sNxt}, v{vCL}")
                if fc:
                    w(f"  v_readfirstlane_b32 s{sLim}, v{vLIM}")
                for e in range(4):
                    w(f"  v_cndmask_b32 v{ALO+e}, 0, v{ARAW+e}, s[{sMLo}:{sMLo+1}]")
                    w(f"  v_cndmask_b32 v{AHI+e}, 0, v{ARAW+e}, s[{sMHi}:{sMHi+1}]")
                if lastbody and not first:
                    w(f"  s_cmp_ge_u32 s{sNxt}, {2*NBLK}")
                    w("  s_cbranch_scc1 L_last")
                if fc:
                    w(f"  s_cmp_gt_u32 s{sNxt}, s{sLim}")
                    w(f"  s_cbranch_scc1 L_stall_{tag}")
                    w(f"L_cont_{tag}:")
                w(f"  s_cmp_ge_u32 s{sNxt}, {NBLK}")
                w(f"  s_cselect_b32 s{SN}, s{sVb}, s{sKb}")
                w(f"  s_cselect_b32 s{SN+1}, s{sVb+1}, s{sKb+1}")
                w(f"  s_cselect_b32 s{SA}, s12, s10")
                w(f"  s_cselect_b32 s{SA+1}, s13, s11")
                w(f"  s_cmp_ge_u32 s{sNxt}, {2*NBLK}")
                w(f"  s_cselect_b32 s{SN+2}, 0, {HEADB}")
                w(f"  s_cselect_b32 s{SA+2}, 0, 65536")
                w(f"  s_add_u32 s{sTmp}, s{sNxt}, s{sStag}")
                w(f"  s_and_b32 s{sTmp}, s{sTmp}, {NBLK-1}")
                w(f"  s_mul_i32 s{sOffN}, s{sTmp}, {BLKB}")
                w(f"  s_lshl_b32 s{sOffA}, s{sTmp}, 7")
            R = RING + 32 * u
            for m in range(4):
                for dw in range(4):
                    x = R + 4 * (2 * m) + dw
                    y = R + 4 * (2 * m + 1) + dw
                    w(f"  v_perm_b32 v{T + 4*(2*dw) + m}, v{y}, v{x}, s{sSelLo}")
                    w(f"  v_perm_b32 v{T + 4*(2*dw+1) + m}, v{y}, v{x}, s{sSelHi}")
                loads(st, u, rows=(2 * m, 2 * m + 1))
            for j in range(8):
                w(f"  v_mfma_f32_16x16x32_bf16 {vr(accf(j))}, {vr(areg)}, {vr(T+4*j)}, {vr(accf(j))}")
            if u == 0:
                loadA()

    def after_body():
        w(f"  s_mov_b32 s{sCur}, s{sNxt}")
        w(f"  s_cmp_lt_u32 s{sCur}, {NBLK}")
        w("  s_cbranch_scc1 L_loop")
        w(f"  s_cmp_eq_u32 s{sDump}, 0")
        w("  s_cbranch_scc1 L_dumpK")

    body(first=True)
    after_body()
    w("  s_branch L_chk")
    w("L_loop:")
    body()
    after_body()
    w("L_chk:")
    w(f"  s_cmp_lt_u32 s{sCur}, {2*NBLK}")
    w("  s_cbranch_scc1 L_loop")
    w("  s_branch L_tail")

    def dump():
        w("  s_nop 7")
        w("  s_nop 1")
        for j in range(8):
            w(f"  ds_write_b128 v{vWP}, {vr(accP(j))} offset:{j*JS}")
        w(f"  s_mov_b64 exec, s[{sExQ}:{sExQ+1}]")
        for j in range(8):
            w(f"  ds_write_b128 v{vWQ}, {vr(accQ(j))} offset:{j*JS}")
        w("  s_mov_b64 exec, -1")

    if fc:
        for tag in ("f", "l"):
            w(f"L_stall_{tag}:")
            w(f"  s_cmp_ge_u32 s{sNxt}, {2*NBLK}")
            w(f"  s_cbranch_scc1 L_cont_{tag}")
            w(f"  s_cmp_lg_u32 s{sOff}, 0")
            w(f"  s_cbranch_scc1 L_cont_{tag}")
            w(f"  s_mov_b32 s{sTry}, 0")
            w(f"L_st_{tag}:")
            w(f"  s_sleep {ssleep}")
            w(f"  ds_read_b32 v{vLIM}, v{vCT} offset:12")
            w("  s_waitcnt lgkmcnt(0)")
            w(f"  v_readfirstlane_b32 s{sLim}, v{vLIM}")
            w("  s_nop 3")
            w(f"  s_cmp_le_u32 s{sNxt}, s{sLim}")
            w(f"  s_cbranch_scc1 L_cont_{tag}")
            w(f"  s_add_u32 s{sTry}, s{sTry}, 1")
            w(f"  s_cmp_lt_u32 s{sTry}, {maxtry}")
            w(f"  s_cbranch_scc1 L_st_{tag}")
            w(f"  s_mov_b32 s{sOff}, 1")
            w(f"  s_branch L_cont_{tag}")

        w("L_ctrl:")
        init_counters()
        w("  s_barrier")
        w("  s_setprio 3")
        w("  s_mov_b32 s62, s78")
        w("  s_mov_b32 s63, s79")
        if xcc == 2:
            w("  s_getreg_b32 s84, hwreg(HW_REG_XCC_ID, 0, 4)")
            w("  s_and_b32 s84, s84, 7")
            w("  s_getreg_b32 s85, hwreg(HW_REG_HW_ID, 8, 8)")
            w("  s_memrealtime s[90:91]")
        if xcc == 1:
            SG = 80
            w(f"  s_mov_b32 s{SG}, s76")
            w(f"  s_and_b32 s{SG+1}, s77, 0xffff")
            w(f"  s_mov_b32 s{SG+2}, 256")
            w(f"  s_mov_b32 s{SG+3}, 0x00020000")
            w("  s_getreg_b32 s84, hwreg(HW_REG_XCC_ID, 0, 4)")
            w("  s_and_b32 s84, s84, 7")
            w("  s_lshl_b32 s85, s84, 2")
            w("  v_mov_b32 v7, 1")
            w("  s_mov_b64 exec, 1")
            w(f"  buffer_atomic_add v7, off, s[{SG}:{SG+3}], s85 sc0")
            w("  s_mov_b64 exec, -1")
        if tlbpf:
            w(f"  s_mul_i32 s{sTmp}, s2, {HEADB}")
            w(f"  s_add_u32 s{SN}, s6, s{sTmp}")
            w(f"  s_addc_u32 s{SN+1}, s7, 0")
            w(f"  s_and_b32 s{SN+1}, s{SN+1}, 0xffff")
            w(f"  s_mov_b32 s{SN+2}, {HEADB}")
            w(f"  s_mov_b32 s{SN+3}, 0x00020000")
            w(f"  s_add_u32 s{SA}, s8, s{sTmp}")
            w(f"  s_addc_u32 s{SA+1}, s9, 0")
            w(f"  s_and_b32 s{SA+1}, s{SA+1}, 0xffff")
            w(f"  s_mov_b32 s{SA+2}, {HEADB}")
            w(f"  s_mov_b32 s{SA+3}, 0x00020000")
            w(f"  v_lshlrev_b32 v12, 18, v{L}")
            w(f"  buffer_load_dword v13, v12, s[{SA}:{SA+3}], 0 offen nt")
            w(f"  buffer_load_dword v14, v12, s[{SN}:{SN+3}], 0 offen nt")
        gsh = GS.bit_length() - 1
        sGrp, sMem, sAll = 86, 87, 88
        sTag = 89
        if xcc == 2:
            assert GS == 8
            w(f"  s_mov_b32 s{sGrp}, s85")
            w(f"  s_mov_b32 s{sMem}, s84")
            w("  s_waitcnt lgkmcnt(0)")
            w(f"  s_lshr_b32 s{sTag}, s90, 10")
            w(f"  s_and_b32 s{sTag}, s{sTag}, 0xffff")
            w(f"  s_lshl_b32 s92, s{sTag}, 16")
            w(f"  s_sub_u32 s93, 2, s{sTag}")
        elif xcc == 1:
            assert GS == 8
            w("  s_waitcnt vmcnt(0)")
            w(f"  v_readfirstlane_b32 s{sGrp}, v7")
            w(f"  s_mov_b32 s{sMem}, s84")
            w(f"  s_mov_b32 s{sAll}, 0")
            w("  s_nop 3")
        else:
            w(f"  s_lshr_b32 s{sGrp}, s{sWG}, {gsh}")
            w(f"  s_and_b32 s{sMem}, s{sWG}, {GS-1}")
            w(f"  s_mov_b32 s{sAll}, 1")
        GSTR = GS*lstride+256
        w(f"  s_min_u32 s{sGrp}, s{sGrp}, 255")
        w(f"  s_mul_i32 s{sTry}, s{sGrp}, {GSTR}")
        w(f"  s_add_u32 s{SD}, s62, {WSOFF}")
        w(f"  s_addc_u32 s{SD+1}, s63, 0")
        w(f"  s_and_b32 s{SD+1}, s{SD+1}, 0xffff")
        if not full:
            w(f"  s_mov_b32 s{SD+2}, 32")
            w(f"  s_mov_b32 s{SD+3}, 0x00020000")
            w(f"  s_and_b32 s{sSlot}, s{sWG}, 7")
            w(f"  s_lshl_b32 s{sSlot}, s{sSlot}, 2")
            w(f"  v_and_b32 v1, 7, v{L}")
            w("  v_lshlrev_b32 v1, 2, v1")
        else:
            w(f"  s_mov_b32 s{SD+2}, {256*GSTR}")
            w(f"  s_mov_b32 s{SD+3}, 0x00020000")
            w(f"  s_mul_i32 s{sSlot}, s{sMem}, {lstride}")
            w(f"  s_add_u32 s{sSlot}, s{sSlot}, s{sTry}")
            w(f"  v_and_b32 v1, 7, v{L}")
            w(f"  v_lshlrev_b32 v6, 4, v1")
            w(f"  v_and_b32 v1, {GS-1}, v{L}")
            w(f"  v_mul_u32_u24 v1, {lstride}, v1")
        w(f"  v_lshrrev_b32 v12, 4, v6")
        w(f"  v_lshlrev_b32 v12, 2, v12")
        w(f"  s_mul_i32 s{sTmp}, s{sGrp}, {phm}")
        if xcc == 2:
            w(f"  s_lshr_b32 s{sTmp2}, s{sGrp}, 5")
            w(f"  s_mul_i32 s{sTmp2}, s{sTmp2}, 9")
            w(f"  s_add_u32 s{sTmp}, s{sTmp}, s{sTmp2}")
        w(f"  s_and_b32 s{sTmp}, s{sTmp}, {S1-1}")
        w(f"  s_sub_u32 s{sLast}, {S1}, s{sTmp}")
        if xcc == 2:
            w(f"  s_or_b32 s94, s{sLast}, s92")
        else:
            w(f"  s_mov_b32 s94, s{sLast}")
        w(f"  v_mov_b32 v8, s94")
        w(f"  v_mov_b32 v9, s94")
        w(f"  v_mov_b32 v10, s94")
        w(f"  v_mov_b32 v11, s94")
        w(f"  s_mov_b64 exec, 255")
        if cst:
            w(f"  buffer_store_dwordx4 v[8:11], v6, s[{SD}:{SD+3}], s{sSlot} offen {stpol}" if not swap else f"  s_mov_b64 exec, 1\n  buffer_atomic_swap v8, off, s[{SD}:{SD+3}], s{sSlot}")
        w("  s_mov_b64 exec, -1")
        w("L_cl:")
        w(f"  ds_read_b32 v2, v{vCT}")
        w("  s_waitcnt lgkmcnt(0)")
        w(f"  v_readfirstlane_b32 s{sNxt}, v2")
        w("  s_nop 3")
        w(f"  s_cmp_ge_u32 s{sNxt}, {2*NBLK}")
        w("  s_cbranch_scc1 L_cfin")
        w(f"  s_cmp_lt_u32 s{sNxt}, s{sLast}")
        w("  s_cbranch_scc1 L_cnopub")
        w(f"  s_cmp_ge_u32 s{sLast}, {SW}")
        w(f"  s_cselect_b32 s{sTmp}, {S2}, {S1}")
        if S3:
            w(f"  s_cmp_ge_u32 s{sLast}, {SW3}")
            w(f"  s_cselect_b32 s{sTmp}, {S3}, s{sTmp}")
        w(f"  s_add_u32 s{sLast}, s{sLast}, s{sTmp}")
        w("L_cpub:")
        if xcc == 2:
            w(f"  s_or_b32 s94, s{sLast}, s92")
        else:
            w(f"  s_mov_b32 s94, s{sLast}")
        w(f"  v_mov_b32 v8, s94")
        w(f"  v_mov_b32 v9, s94")
        w(f"  v_mov_b32 v10, s94")
        w(f"  v_mov_b32 v11, s94")
        w(f"  s_mov_b64 exec, 255")
        if cst:
            w(f"  buffer_store_dwordx4 v[8:11], v6, s[{SD}:{SD+3}], s{sSlot} offen {stpol}" if not swap else f"  s_mov_b64 exec, 1\n  buffer_atomic_swap v8, off, s[{SD}:{SD+3}], s{sSlot}")
        w("  s_mov_b64 exec, -1")
        w("L_cnopub:")
        w(f"  buffer_load_dword v4, v1, s[{SD}:{SD+3}], s{sTry} offen {ldpol}")
        if xcc == 2:
            w("  s_waitcnt vmcnt(0)")
            w("  v_lshrrev_b32 v13, 16, v4")
            w("  v_add_u32 v13, s93, v13")
            w("  v_and_b32 v13, 0xffff, v13")
            w("  v_and_b32 v4, 0xffff, v4")
            w("  v_cmp_ge_u32 vcc, 4, v13")
            w("  v_mov_b32 v14, 255")
            w("  s_nop 0")
            w("  v_cndmask_b32 v4, v14, v4, vcc")
        if xcc == 1:
            w(f"  s_cmp_lg_u32 s{sAll}, 0")
            w("  s_cbranch_scc1 L_call")
            w(f"  buffer_load_dword v13, v12, s[{SG}:{SG+3}], 0 offen sc1")
            w("  s_waitcnt vmcnt(0)")
            w(f"  v_cmp_lt_u32 vcc, s{sGrp}, v13")
            w("  v_mov_b32 v14, 255")
            w("  s_nop 0")
            w("  v_cndmask_b32 v4, v14, v4, vcc")
            w("  s_cmp_eq_u64 vcc, -1")
            w(f"  s_cselect_b32 s{sAll}, 1, 0")
            w("L_call:")
        w("  s_waitcnt vmcnt(0)")
        if GS > 8:
            for sh in (1, 2, 4, 8):
                w("  s_nop 1")
                w(f"  v_min_u32_dpp v4, v4, v4 row_ror:{sh} row_mask:0xf bank_mask:0xf")
            w("  s_nop 1")
            nrow = GS // 16
            for i in range(nrow):
                w(f"  v_readlane_b32 s{64+i}, v4, {16*i}")
            w("  s_nop 3")
            for i in range(1, nrow):
                w(f"  s_min_u32 s64, s64, s{64+i}")
        else:
            for i in range(8):
                w(f"  v_readlane_b32 s{64+i}, v4, {i}")
            w("  s_nop 3")
            for i in range(1, 8):
                w(f"  s_min_u32 s64, s64, s{64+i}")
        w(f"  s_min_u32 s64, s64, 250")
        w(f"  s_add_u32 s64, s64, {D}")
        w("  v_mov_b32 v5, s64")
        w("  s_mov_b64 exec, 1")
        w(f"  ds_write_b32 v{vCT}, v5 offset:12")
        w("  s_mov_b64 exec, -1")
        if csleep:
            w(f"  s_sleep {csleep}")
        w("  s_branch L_cl")
        w("L_cfin:")
        if xcc == 2:
            w(f"  s_or_b32 s94, 255, s92")
        else:
            w(f"  s_mov_b32 s94, 255")
        w(f"  v_mov_b32 v8, s94")
        w(f"  v_mov_b32 v9, s94")
        w(f"  v_mov_b32 v10, s94")
        w(f"  v_mov_b32 v11, s94")
        w(f"  s_mov_b64 exec, 255")
        if cst:
            w(f"  buffer_store_dwordx4 v[8:11], v6, s[{SD}:{SD+3}], s{sSlot} offen {stpol}" if not swap else f"  s_mov_b64 exec, 1\n  buffer_atomic_swap v8, off, s[{SD}:{SD+3}], s{sSlot}")
        w("L_cexit:")
        w("  v_mov_b32 v5, 255")
        w("  s_mov_b64 exec, 1")
        w(f"  ds_write_b32 v{vCT}, v5 offset:12")
        w("  s_endpgm")

    def reduce_partials(dst, va):
        for p in range(8):
            w(f"  ds_read_b128 {vr(T+4*p)}, v{va} offset:{p*PS}")
        for p in range(8):
            w(f"  s_waitcnt lgkmcnt({7-p})")
            for e in range(4):
                if p == 0:
                    w(f"  v_mov_b32 v{dst+e}, v{T+4*p+e}")
                else:
                    w(f"  v_add_f32 v{dst+e}, v{dst+e}, v{T+4*p+e}")

    w("L_dumpK:")
    stamp(3)
    w(f"  s_mov_b32 s{sDump}, 1")
    dump()
    w("  s_mov_b64 exec, 1")
    w(f"  ds_add_rtn_u32 v{vCL}, v{vCT}, v{vOne} offset:4")
    w("  s_mov_b64 exec, -1")
    for r in range(64):
        w(f"  v_mov_b32 v{ACC+r}, 0")
    w("  s_waitcnt lgkmcnt(0)")
    w(f"  v_readfirstlane_b32 s{sTmp}, v{vCL}")
    w("  s_nop 3")
    w(f"  s_cmp_lg_u32 s{sTmp}, {NW-1}")
    w("  s_cbranch_scc1 L_chk")
    SUM = ALO
    VA, VK = AHI, AHI+2
    w(f"  v_mov_b32 v{VA}, v{vRD}")
    w(f"  v_mov_b32 v{VK}, v{vKW}")
    w(f"  s_mov_b32 s{sPi}, 0")
    w("L_kred:")
    reduce_partials(SUM, VA)
    w(f"  v_cvt_pk_bf16_f32 v{T}, v{SUM}, v{SUM+1}")
    w(f"  v_cvt_pk_bf16_f32 v{T+1}, v{SUM+2}, v{SUM+3}")
    w(f"  ds_write_b16 v{VK}, v{T} offset:0")
    w(f"  ds_write_b16_d16_hi v{VK}, v{T} offset:{KPROW}")
    w(f"  ds_write_b16 v{VK}, v{T+1} offset:{2*KPROW}")
    w(f"  ds_write_b16_d16_hi v{VK}, v{T+1} offset:{3*KPROW}")
    w(f"  v_add_u32 v{VA}, 64, v{VA}")
    w(f"  v_add_u32 v{VK}, 64, v{VK}")
    w(f"  s_add_u32 s{sPi}, s{sPi}, 1")
    w(f"  s_cmp_lt_u32 s{sPi}, 6")
    w("  s_waitcnt lgkmcnt(0)")
    w("  s_cbranch_scc1 L_kred")
    S = T + 24
    for e in range(4):
        w(f"  v_mov_b32 v{S+e}, 0")
    for t in range(6):
        w(f"  ds_read_b128 {vr(T+4*t)}, v{vKR} offset:{t*64}")
    w("  s_waitcnt vmcnt(25)")
    for t in range(6):
        w(f"  s_waitcnt lgkmcnt({5-t})")
        w(f"  v_mfma_f32_16x16x32_bf16 {vr(S)}, {vr(T+4*t)}, {vr(QF+4*t)}, {vr(S)}")
    w("  s_nop 7")
    w("  s_nop 1")
    w(f"  s_mov_b32 s{sC0}, 0x3d93cd3a")
    w(f"  s_mov_b32 s{sC1}, 0x3fb8aa3b")
    X = T
    for rep in range(2):
        w(f"  v_cvt_pk_bf16_f32 v{X}, v{S}, v{S+1}")
        w(f"  v_cvt_pk_bf16_f32 v{X+1}, v{S+2}, v{S+3}")
        w(f"  v_lshlrev_b32 v{S}, 16, v{X}")
        w(f"  v_and_b32 v{S+1}, 0xffff0000, v{X}")
        w(f"  v_lshlrev_b32 v{S+2}, 16, v{X+1}")
        w(f"  v_and_b32 v{S+3}, 0xffff0000, v{X+1}")
        if rep == 0:
            for e in range(4):
                w(f"  v_mul_f32 v{S+e}, s{sC0}, v{S+e}")
    w(f"  v_max_f32 v{X}, v{S}, v{S+1}")
    w(f"  v_max3_f32 v{X}, v{X}, v{S+2}, v{S+3}")
    w(f"  ds_swizzle_b32 v{X+1}, v{X} offset:0x401F")
    w("  s_waitcnt lgkmcnt(0)")
    w(f"  v_max_f32 v{X}, v{X}, v{X+1}")
    for e in range(4):
        w(f"  v_sub_f32 v{S+e}, v{S+e}, v{X}")
    for e in range(4):
        w(f"  v_mul_f32 v{S+e}, s{sC1}, v{S+e}")
    for e in range(4):
        w(f"  v_exp_f32 v{S+e}, v{S+e}")
    w("  s_nop 0")
    w(f"  v_add_f32 v{X}, v{S}, v{S+1}")
    w(f"  v_add_f32 v{X+1}, v{S+2}, v{S+3}")
    w(f"  v_add_f32 v{X}, v{X}, v{X+1}")
    w(f"  ds_swizzle_b32 v{X+1}, v{X} offset:0x401F")
    w("  s_waitcnt lgkmcnt(0)")
    w(f"  v_add_f32 v{X}, v{X}, v{X+1}")
    w(f"  v_rcp_f32 v{X}, v{X}")
    w("  s_nop 0")
    for e in range(4):
        w(f"  v_mul_f32 v{S+e}, v{S+e}, v{X}")
    w(f"  v_cvt_pk_bf16_f32 v{X}, v{S}, v{S+1}")
    w(f"  v_cvt_pk_bf16_f32 v{X+1}, v{S+2}, v{S+3}")
    w(f"  ds_write_b64 v{vPF}, {vr(X,2)}")
    w("  s_mov_b64 exec, 1")
    w(f"  ds_write_b32 v{vCT}, v{vOne} offset:8")
    w("  s_mov_b64 exec, -1")
    w("  s_waitcnt lgkmcnt(0)")
    w("  s_branch L_chk")

    if lastbody:
        w("L_last:")
        body_last()
        w(f"  s_mov_b32 s{sCur}, s{sNxt}")
        w(f"  s_cmp_eq_u32 s{sDump}, 0")
        w("  s_cbranch_scc1 L_dumpK")
    w("L_tail:")
    stamp(4)
    w("L_spin:")
    w(f"  ds_read_b32 v{vCL}, v{vCT} offset:8")
    w("  s_waitcnt lgkmcnt(0)")
    w(f"  v_readfirstlane_b32 s{sTmp}, v{vCL}")
    w("  s_nop 3")
    w(f"  s_cmp_lg_u32 s{sTmp}, 0")
    w("  s_cbranch_scc1 L_go")
    w("  s_sleep 1")
    w("  s_branch L_spin")
    w("L_go:")
    dump()
    PB = QF
    w(f"  ds_read_b64 {vr(PB,2)}, v{vPF}")
    w("  s_mov_b64 exec, 1")
    w(f"  ds_add_u32 v{vCT}, v{vOne} offset:16")
    w("  s_mov_b64 exec, -1")
    w(f"  s_mul_i32 s{sTmp}, s{sW}, 96")
    w(f"  v_add_u32 v{vRD}, s{sTmp}, v{vRD}")
    w(f"  v_add_u32 v{vRD2}, s{sTmp}, v{vRD2}")
    w("L_vspin:")
    w(f"  ds_read_b32 v{vCL}, v{vCT} offset:16")
    w("  s_waitcnt lgkmcnt(0)")
    w(f"  v_readfirstlane_b32 s{sTmp}, v{vCL}")
    w("  s_nop 3")
    w(f"  s_cmp_lt_u32 s{sTmp}, {NW}")
    w("  s_cbranch_scc1 L_vspin")
    BA = ACC
    BB = ACC + 32
    for p in range(8):
        w(f"  ds_read_b128 {vr(BA+4*p)}, v{vRD} offset:{p*PS}")
    for p in range(4):
        w(f"  ds_read_b128 {vr(BB+4*p)}, v{vRD2} offset:{p*PS}")
    w(f"  v_cndmask_b32 v{PB+2}, 0, v{PB}, s[{sG01}:{sG01+1}]")
    w(f"  v_cndmask_b32 v{PB+3}, 0, v{PB+1}, s[{sG01}:{sG01+1}]")
    w(f"  v_cndmask_b32 v{PB+4}, 0, v{PB}, s[{sG23}:{sG23+1}]")
    w(f"  v_cndmask_b32 v{PB+5}, 0, v{PB+1}, s[{sG23}:{sG23+1}]")
    for p in range(1, 8):
        w(f"  s_waitcnt lgkmcnt({11-p})")
        for e in range(4):
            w(f"  v_add_f32 v{BA+e}, v{BA+e}, v{BA+4*p+e}")
    Dd = T
    w(f"  v_cvt_pk_bf16_f32 v{Dd}, v{BA}, v{BA+1}")
    w(f"  v_cvt_pk_bf16_f32 v{Dd+1}, v{BA+2}, v{BA+3}")
    for p in range(1, 4):
        w(f"  s_waitcnt lgkmcnt({3-p})")
        for e in range(4):
            w(f"  v_add_f32 v{BB+e}, v{BB+e}, v{BB+4*p+e}")
    w(f"  v_mfma_f32_16x16x16_bf16 {vr(Dd+8)}, {vr(Dd,2)}, {vr(PB+2,2)}, 0")
    w(f"  v_mfma_f32_16x16x16_bf16 {vr(Dd+12)}, {vr(Dd,2)}, {vr(PB+4,2)}, 0")
    for e in range(4):
        w(f"  v_mov_b32 v{BB+4+e}, v{BB+e}")
    w("  s_nop 1")
    for e in range(4):
        w(f"  v_permlane32_swap_b32 v{BB+e}, v{BB+4+e}")
    w("  s_nop 1")
    for e in range(4):
        w(f"  v_add_f32 v{BB+e}, v{BB+e}, v{BB+4+e}")
    w(f"  v_cvt_pk_bf16_f32 v{Dd+2}, v{BB}, v{BB+1}")
    w(f"  v_cvt_pk_bf16_f32 v{Dd+3}, v{BB+2}, v{BB+3}")
    w(f"  v_cvt_pk_bf16_f32 v{Dd+20}, v{Dd+8}, v{Dd+9}")
    w(f"  v_cvt_pk_bf16_f32 v{Dd+21}, v{Dd+10}, v{Dd+11}")
    w(f"  v_mfma_f32_16x16x16_bf16 {vr(Dd+16)}, {vr(Dd+2,2)}, {vr(PB+2,2)}, 0")
    w(f"  v_cvt_pk_bf16_f32 v{Dd+22}, v{Dd+12}, v{Dd+13}")
    w(f"  v_cvt_pk_bf16_f32 v{Dd+23}, v{Dd+14}, v{Dd+15}")
    w(f"  buffer_store_dwordx2 {vr(Dd+20,2)}, v{vOUT}, s[{SO}:{SO+3}], 0 offen{OPOL}")
    w(f"  buffer_store_dwordx2 {vr(Dd+22,2)}, v{vOUT}, s[{SO}:{SO+3}], 0 offen offset:32{OPOL}")
    w("  s_nop 7")
    w(f"  v_cvt_pk_bf16_f32 v{Dd+24}, v{Dd+16}, v{Dd+17}")
    w(f"  v_cvt_pk_bf16_f32 v{Dd+25}, v{Dd+18}, v{Dd+19}")
    w(f"  buffer_store_dwordx2 {vr(Dd+24,2)}, v{vOUT}, s[{SO}:{SO+3}], 0 offen offset:64{OPOL}")
    if stamps:
        w("  s_waitcnt vmcnt(0)")
        stamp(5)
        w("  s_waitcnt lgkmcnt(0)")
        w(f"  s_mul_i32 s92, s3, {NW}")
        w(f"  s_add_u32 s92, s92, s{sW}")
        w("  s_lshl_b32 s92, s92, 5")
        w("  s_add_u32 s88, s78, s92")
        w("  s_addc_u32 s89, s79, 0")
        w("  s_and_b32 s89, s89, 0xffff")
        w("  s_mov_b32 s90, 32")
        w("  s_mov_b32 s91, 0x00020000")
        for i in range(6):
            w(f"  v_mov_b32 v{ACC+i}, s{64+2*i}")
        w(f"  v_mov_b32 v{ACC+8}, 0")
        w("  s_mov_b64 exec, 1")
        w(f"  buffer_store_dwordx4 {vr(ACC)}, v{ACC+8}, s[88:91], 0 offen")
        w(f"  buffer_store_dwordx2 {vr(ACC+4,2)}, v{ACC+8}, s[88:91], 0 offen offset:16")
    if tlog:
        w("  s_memrealtime s[64:65]")
        w("  s_waitcnt lgkmcnt(0)")
        w(f"  s_mov_b32 m0, s{sIter}"); w(f"  v_writelane_b32 v{vLOG}, s64, m0")
        w(f"  s_mul_i32 s92, s3, {NW}")
        w(f"  s_add_u32 s92, s92, s{sW}")
        w("  s_lshl_b32 s92, s92, 8")
        w("  s_add_u32 s88, s78, s92")
        w("  s_addc_u32 s89, s79, 0")
        w("  s_and_b32 s89, s89, 0xffff")
        w("  s_mov_b32 s90, 256")
        w("  s_mov_b32 s91, 0x00020000")
        w("  v_and_b32 v0, 63, v0")
        w("  v_lshlrev_b32 v0, 2, v0")
        w(f"  buffer_store_dword v{vLOG}, v0, s[88:91], 0 offen")
    w("L_end:")
    w("  s_endpgm")
    w('.section .rodata,"a"')
    w(".p2align 6")
    w(f".amdhsa_kernel {KNAME}")
    w(f"  .amdhsa_next_free_vgpr {NV}")
    w("  .amdhsa_next_free_sgpr 102")
    w(f"  .amdhsa_accum_offset {(NV+3)//4*4}")
    w("  .amdhsa_group_segment_fixed_size 0")
    w("  .amdhsa_kernarg_size 64")
    w("  .amdhsa_user_sgpr_count 2")
    w("  .amdhsa_user_sgpr_kernarg_segment_ptr 1")
    w("  .amdhsa_system_sgpr_workgroup_id_x 1")
    w(".end_amdhsa_kernel")
    return "\n".join(o) + "\n"


if __name__ == "__main__":
    out = sys.argv[1] if len(sys.argv) > 1 else "standalone__low_rank_proj_linformer__sampling.s"
    kw = {}
    for a in sys.argv[2:]:
        k_, v_ = a.split("=")
        try:
            kw[k_] = int(v_)
        except ValueError:
            kw[k_] = v_.replace("+", " ")
    open(out, "w").write(gen(**kw))
```

```python
import sys

KNAME = "standalone__low_rank_proj_linformer__sampling_kernel"

HEADER = """; Kernarg layout for this problem (64 bytes, ptrs only, base s[0:1]):
"""


def gen(nt=1, stamps=0, stag=1, minlds=84000, hmap=0, fc=1, D=6, maxtry=4096, csleep=4, ssleep=1, cst=1, cld=1, stpol='sc1', ldpol='sc1', gstride=1280, pubstep=2, full=1, lstride=128, S1=16, S2=8, SW=96, phm=5, tlbpf=1, lastbody=1, GS=8, S3=0, SW3=116, xcc=0, opol='', tlog=0, swap=0, pfd=0, pfl=6, pfs=4096):
    NW = 4
    o = []
    w = o.append
    NT = " nt" if nt else ""
    OPOL = (" " + opol) if opol else ""

    def stamp(i):
        if stamps:
            w(f"  s_memrealtime s[{64+2*i}:{65+2*i}]")

    HEADB = 4096 * 384
    BLKB = 64 * 384
    NBLK = 64
    JS = 26 * 16
    RS = 8 * JS
    PS = 2 * RS
    NPART = 2 * NW
    KPB = NPART * PS
    KPROW = 400
    PFR = KPB + 8 * KPROW
    CTR = PFR + 512
    LDS = CTR + 32
    LDS = max(LDS, minlds)
    LDS = (LDS + 255) // 256 * 256
    WSOFF = 1 << 20

    vS = [1, 2, 3]
    vA = 4
    vWP, vWQ, vRD = 5, 6, 7
    vKW, vKR, vOUT, vRD2 = 8, 9, 10, 11
    ARAW, ALO, AHI = 12, 16, 20
    T = 24
    QF = 56
    vCL, vCT, vPF, vOne = 80, 81, 82, 83
    ACC = 84
    RING = 148
    vLIM = RING + 96
    vLOG = RING + 97
    NV = RING + 100
    sIter = 101

    def accP(j): return ACC + 4 * j
    def accQ(j): return ACC + 32 + 4 * j
    def vr(b, n=4): return f"v[{b}:{b+n-1}]"

    SN, SA, SQ, SO = 16, 20, 24, 28
    sKb, sVb = 32, 34
    sW, sCur, sOffN, sOffA = 36, 37, 38, 39
    sSelLo, sSelHi = 40, 41
    sMLo, sMHi = 42, 44
    sTmp, sTmp2 = 46, 47
    sExQ = 48
    sG01, sG23 = 50, 52
    sC0, sC1 = 54, 55
    sNxt, sDump, sPi, sStag = 56, 57, 58, 59
    SD = 60
    sLim, sTry, sOff, sSlot, sLast = 96, 97, 98, 99, 100
    sWG = 3

    nthreads = (NW + (1 if fc else 0)) * 64
    w(HEADER.rstrip("\n"))
    w(f"; @launch grid=(256,1,1) block=({nthreads},1,1) lds={LDS}")
    w('.amdgcn_target "amdgcn-amd-amdhsa--gfx950"')
    w(".text")
    w(f".globl {KNAME}")
    w(".p2align 8")
    w(f".type {KNAME},@function")
    w(f"{KNAME}:")
    w("  s_cmp_ge_u32 s2, 256")
    w("  s_cbranch_scc1 L_end")
    stamp(0)
    w("  s_mov_b32 s3, s2")
    if hmap == 1:
        w("  s_lshr_b32 s60, s3, 3")
        w("  s_and_b32 s61, s3, 7")
        w("  s_lshl_b32 s61, s61, 5")
        w("  s_add_u32 s2, s60, s61")
    w("  s_load_dwordx8 s[4:11], s[0:1], 0")
    w("  s_load_dwordx4 s[12:15], s[0:1], 32")
    w("  s_load_dwordx4 s[76:79], s[0:1], 48")
    L, WV, G, C, CC, HF, G16, C16, G3K = T, T+1, T+2, T+3, T+4, T+5, T+6, T+7, T+8
    w(f"  v_and_b32 v{L}, 63, v0")
    w(f"  v_lshrrev_b32 v{WV}, 6, v0")
    w(f"  v_lshrrev_b32 v{G}, 4, v{L}")
    w(f"  v_and_b32 v{C}, 15, v{L}")
    w(f"  v_readfirstlane_b32 s{sW}, v{WV}")
    w(f"  v_mul_u32_u24 v{G3K}, 3072, v{G}")
    w(f"  v_lshlrev_b32 v{C16}, 4, v{C}")
    w(f"  v_mov_b32 v{vCT}, {CTR}")
    w(f"  v_mov_b32 v{vOne}, 1")
    if fc:
        w(f"  s_cmp_eq_u32 s{sW}, {NW}")
        w("  s_cbranch_scc1 L_ctrl")
    w(f"  v_add_u32 v{vS[0]}, v{G3K}, v{C16}")
    w(f"  v_add_u32 v{vS[2]}, {12288+128}, v{vS[0]}")
    w(f"  v_and_b32 v{CC}, 7, v{C}")
    w(f"  v_lshrrev_b32 v{HF}, 3, v{C}")
    w(f"  v_lshlrev_b32 v{T+9}, 4, v{CC}")
    w(f"  v_add_u32 v{T+9}, v{G3K}, v{T+9}")
    w(f"  v_mul_u32_u24 v{T+10}, {12288-256}, v{HF}")
    w(f"  v_add_u32 v{T+9}, v{T+9}, v{T+10}")
    w(f"  v_add_u32 v{vS[1]}, 256, v{T+9}")
    w(f"  v_lshlrev_b32 v{T+9}, 13, v{CC}")
    w(f"  v_lshlrev_b32 v{T+10}, 6, v{HF}")
    w(f"  v_lshlrev_b32 v{G16}, 4, v{G}")
    w(f"  v_add3_u32 v{vA}, v{T+9}, v{T+10}, v{G16}")
    w(f"  s_mul_i32 s{sTmp}, s2, {HEADB}")
    w(f"  s_mul_i32 s{sStag}, s2, {stag}")
    w(f"  s_add_u32 s{sTmp2}, s{sStag}, s{sW}")
    w(f"  s_and_b32 s{sTmp2}, s{sTmp2}, {NBLK-1}")
    w(f"  s_mul_i32 s{sOffN}, s{sTmp2}, {BLKB}")
    w(f"  s_lshl_b32 s{sOffA}, s{sTmp2}, 7")
    w(f"  s_mov_b32 s{SN+2}, {HEADB}")
    w(f"  s_mov_b32 s{SN+3}, 0x00020000")
    w(f"  s_mov_b32 s{SA+2}, 65536")
    w(f"  s_mov_b32 s{SA+3}, 0x00020000")
    w("  s_waitcnt lgkmcnt(0)")
    w(f"  s_add_u32 s{sKb}, s6, s{sTmp}")
    w(f"  s_addc_u32 s{sKb+1}, s7, 0")
    w(f"  s_and_b32 s{sKb+1}, s{sKb+1}, 0xffff")
    w(f"  s_mov_b32 s{SN}, s{sKb}")
    w(f"  s_mov_b32 s{SN+1}, s{sKb+1}")
    w(f"  s_mov_b32 s{SA}, s10")
    w(f"  s_and_b32 s{SA+1}, s11, 0xffff")

    def loads(unit_set, ring_slot, rows=range(8)):
        for i in rows:
            w(f"  buffer_load_dwordx4 {vr(RING + 32*ring_slot + 4*i)}, v{vS[unit_set]}, s[{SN}:{SN+3}], s{sOffN} offen offset:{i*384}{NT}")

    def loadA():
        w(f"  buffer_load_dwordx4 {vr(ARAW)}, v{vA}, s[{SA}:{SA+3}], s{sOffA} offen")

    UNITS = [(1, ARAW, accQ), (0, ALO, accP), (2, AHI, accP)]

    loads(UNITS[0][0], 0)
    loadA()
    loads(UNITS[1][0], 1)
    loads(UNITS[2][0], 2)
    stamp(1)
    w(f"  s_add_u32 s{sVb}, s8, s{sTmp}")
    w(f"  s_addc_u32 s{sVb+1}, s9, 0")
    w(f"  s_and_b32 s{sVb+1}, s{sVb+1}, 0xffff")
    w(f"  s_and_b32 s11, s11, 0xffff")
    w(f"  s_and_b32 s13, s13, 0xffff")
    w(f"  s_mul_i32 s{sTmp2}, s2, 6144")
    w(f"  s_add_u32 s{SQ}, s4, s{sTmp2}")
    w(f"  s_addc_u32 s{SQ+1}, s5, 0")
    w(f"  s_and_b32 s{SQ+1}, s{SQ+1}, 0xffff")
    w(f"  s_mov_b32 s{SQ+2}, 6144")
    w(f"  s_mov_b32 s{SQ+3}, 0x00020000")
    w(f"  s_add_u32 s{SO}, s14, s{sTmp2}")
    w(f"  s_addc_u32 s{SO+1}, s15, 0")
    w(f"  s_and_b32 s{SO+1}, s{SO+1}, 0xffff")
    w(f"  s_mov_b32 s{SO+2}, 6144")
    w(f"  s_mov_b32 s{SO+3}, 0x00020000")
    w(f"  s_mov_b32 s{sSelLo}, 0x05040100")
    w(f"  s_mov_b32 s{sSelHi}, 0x07060302")
    w(f"  s_mov_b32 s{sMLo}, 0x00ff00ff")
    w(f"  s_mov_b32 s{sMLo+1}, 0x00ff00ff")
    w(f"  s_mov_b32 s{sMHi}, 0xff00ff00")
    w(f"  s_mov_b32 s{sMHi+1}, 0xff00ff00")
    w(f"  s_mov_b32 s{sExQ}, 0x00ff00ff")
    w(f"  s_mov_b32 s{sExQ+1}, 0xff00ff00")
    w(f"  s_mov_b32 s{sG01}, -1")
    w(f"  s_mov_b32 s{sG01+1}, 0")
    w(f"  s_mov_b32 s{sG23}, 0")
    w(f"  s_mov_b32 s{sG23+1}, -1")
    w(f"  s_mov_b32 s{sCur}, s{sW}")
    w(f"  s_mov_b32 s{sDump}, 0")
    w(f"  s_mov_b32 s{sOff}, 0")
    if tlog:
        w(f"  s_mov_b32 s{sIter}, 0")
        w(f"  v_mov_b32 v{vLOG}, 0")
    QO = T + 11
    w(f"  v_mul_u32_u24 v{QO}, 384, v{C}")
    w(f"  v_add_u32 v{QO}, v{QO}, v{G16}")
    for t in range(6):
        w(f"  buffer_load_dwordx4 {vr(QF+4*t)}, v{QO}, s[{SQ}:{SQ+3}], 0 offen offset:{t*64}")
    PART, RH, X1, X2, X3 = T+12, T+13, T+14, T+15, T+16
    w(f"  v_lshrrev_b32 v{PART}, 1, v{G}")
    w(f"  v_and_b32 v{RH}, 1, v{G}")
    w(f"  v_lshlrev_b32 v{X1}, 1, v{WV}")
    w(f"  v_add_u32 v{X1}, v{X1}, v{PART}")
    w(f"  v_mul_u32_u24 v{X1}, {PS}, v{X1}")
    w(f"  v_mul_u32_u24 v{X2}, {RS}, v{RH}")
    w(f"  v_add_u32 v{X1}, v{X1}, v{X2}")
    w(f"  v_lshlrev_b32 v{X3}, 7, v{PART}")
    w(f"  v_add3_u32 v{vWP}, v{X1}, v{X3}, v{C16}")
    w(f"  v_mul_u32_u24 v{X3}, 384, v{PART}")
    w(f"  v_add_u32 v{X1}, v{X1}, v{C16}")
    w(f"  v_add_u32 v{X1}, 256, v{X1}")
    w(f"  v_sub_u32 v{vWQ}, v{X1}, v{X3}")
    w(f"  v_lshlrev_b32 v{X1}, 1, v{PART}")
    w(f"  v_add_u32 v{X1}, v{X1}, v{HF}")
    w(f"  v_lshlrev_b32 v{X1}, 4, v{X1}")
    w(f"  v_mul_u32_u24 v{X3}, {JS}, v{CC}")
    w(f"  v_add3_u32 v{vRD}, v{X1}, v{X3}, v{X2}")
    w(f"  v_lshlrev_b32 v{X1}, 4, v{PART}")
    w(f"  v_add_u32 v{X1}, v{X1}, v{C}")
    w(f"  v_lshlrev_b32 v{X1}, 1, v{X1}")
    w(f"  v_mul_u32_u24 v{X3}, {4*KPROW}, v{RH}")
    w(f"  v_add_u32 v{X3}, {KPB}, v{X3}")
    w(f"  v_add_u32 v{vKW}, v{X1}, v{X3}")
    w(f"  v_mul_u32_u24 v{X3}, {KPROW}, v{CC}")
    w(f"  v_add_u32 v{X3}, {KPB}, v{X3}")
    w(f"  v_add_u32 v{vKR}, v{X3}, v{G16}")
    w(f"  v_mul_u32_u24 v{X1}, 384, v{C}")
    w(f"  v_mul_u32_u24 v{X2}, 96, v{WV}")
    w(f"  v_lshlrev_b32 v{X3}, 3, v{G}")
    w(f"  v_add3_u32 v{vOUT}, v{X1}, v{X2}, v{X3}")
    w(f"  v_mul_u32_u24 v{X1}, {RS}, v{RH}")
    w(f"  v_mul_u32_u24 v{X2}, {JS}, v{CC}")
    w(f"  v_lshlrev_b32 v{X3}, 4, v{HF}")
    w(f"  v_add3_u32 v{X1}, v{X1}, v{X2}, v{X3}")
    w(f"  v_mul_u32_u24 v{X2}, {4*PS}, v{PART}")
    w(f"  v_add_u32 v{X1}, v{X1}, v{X2}")
    w(f"  v_add_u32 v{vRD2}, 64, v{X1}")
    w(f"  v_lshlrev_b32 v{X1}, 3, v{L}")
    w(f"  v_add_u32 v{vPF}, {PFR}, v{X1}")

    def init_counters():
        w(f"  v_mov_b32 v{X1}, {NW}")
        w(f"  v_mov_b32 v{X2}, 0")
        w(f"  v_mov_b32 v{X3}, 0")
        w(f"  v_mov_b32 v{X3+1}, 255")
        w(f"  v_mov_b32 v{X3+2}, 0")
        w(f"  v_mov_b32 v{X3+3}, 0")
        w(f"  ds_write_b128 v{vCT}, {vr(X1)}")
        w(f"  ds_write_b64 v{vCT}, {vr(X3+2,2)} offset:16")
        w("  s_waitcnt lgkmcnt(0)")

    if not fc:
        w(f"  s_cmp_lg_u32 s{sW}, 0")
        w("  s_cbranch_scc1 L_noinit")
        init_counters()
        w("L_noinit:")
    for r in range(64):
        w(f"  v_mov_b32 v{ACC+r}, 0")
    w("  s_barrier")
    if stamps:
        w("  s_waitcnt vmcnt(22)")
        stamp(2)

    def body_last():
        for u, (st, areg, accf) in enumerate(UNITS):
            if u == 1:
                w("  s_waitcnt vmcnt(8)")
            if u == 2:
                w("  s_waitcnt vmcnt(0)")
            R = RING + 32 * u
            for dw in range(4):
                for m in range(4):
                    x = R + 4 * (2 * m) + dw
                    y = R + 4 * (2 * m + 1) + dw
                    w(f"  v_perm_b32 v{T + 4*(2*dw) + m}, v{y}, v{x}, s{sSelLo}")
                    w(f"  v_perm_b32 v{T + 4*(2*dw+1) + m}, v{y}, v{x}, s{sSelHi}")
                if dw >= 1:
                    for j in (2*(dw-1), 2*(dw-1)+1):
                        w(f"  v_mfma_f32_16x16x32_bf16 {vr(accf(j))}, {vr(areg)}, {vr(T+4*j)}, {vr(accf(j))}")
            w("  s_nop 1")
            for j in (6, 7):
                w(f"  v_mfma_f32_16x16x32_bf16 {vr(accf(j))}, {vr(areg)}, {vr(T+4*j)}, {vr(accf(j))}")

    def body(first=False):
        extra = 6 if first else 0
        tag = "f" if first else "l"
        w("  s_mov_b64 exec, 1")
        w(f"  ds_add_rtn_u32 v{vCL}, v{vCT}, v{vOne}")
        w("  s_mov_b64 exec, -1")
        if fc:
            w(f"  ds_read_b32 v{vLIM}, v{vCT} offset:12")
        for u, (st, areg, accf) in enumerate(UNITS):
            n_out = (16 if u == 0 else 17) + extra
            w(f"  s_waitcnt vmcnt({n_out})")
            if u == 0:
                if tlog:
                    w("  s_memrealtime s[64:65]")
                w("  s_waitcnt lgkmcnt(0)")
                if tlog:
                    w(f"  s_mov_b32 m0, s{sIter}"); w(f"  v_writelane_b32 v{vLOG}, s64, m0")
                    w(f"  s_add_u32 s{sIter}, s{sIter}, 1")
                w(f"  v_readfirstlane_b32 s{sNxt}, v{vCL}")
                if fc:
                    w(f"  v_readfirstlane_b32 s{sLim}, v{vLIM}")
                for e in range(4):
                    w(f"  v_cndmask_b32 v{ALO+e}, 0, v{ARAW+e}, s[{sMLo}:{sMLo+1}]")
                    w(f"  v_cndmask_b32 v{AHI+e}, 0, v{ARAW+e}, s[{sMHi}:{sMHi+1}]")
                if lastbody and not first:
                    w(f"  s_cmp_ge_u32 s{sNxt}, {2*NBLK}")
                    w("  s_cbranch_scc1 L_last")
                if fc:
                    w(f"  s_cmp_gt_u32 s{sNxt}, s{sLim}")
                    w(f"  s_cbranch_scc1 L_stall_{tag}")
                    w(f"L_cont_{tag}:")
                w(f"  s_cmp_ge_u32 s{sNxt}, {NBLK}")
                w(f"  s_cselect_b32 s{SN}, s{sVb}, s{sKb}")
                w(f"  s_cselect_b32 s{SN+1}, s{sVb+1}, s{sKb+1}")
                w(f"  s_cselect_b32 s{SA}, s12, s10")
                w(f"  s_cselect_b32 s{SA+1}, s13, s11")
                w(f"  s_cmp_ge_u32 s{sNxt}, {2*NBLK}")
                w(f"  s_cselect_b32 s{SN+2}, 0, {HEADB}")
                w(f"  s_cselect_b32 s{SA+2}, 0, 65536")
                w(f"  s_add_u32 s{sTmp}, s{sNxt}, s{sStag}")
                w(f"  s_and_b32 s{sTmp}, s{sTmp}, {NBLK-1}")
                w(f"  s_mul_i32 s{sOffN}, s{sTmp}, {BLKB}")
                w(f"  s_lshl_b32 s{sOffA}, s{sTmp}, 7")
            R = RING + 32 * u
            for m in range(4):
                for dw in range(4):
                    x = R + 4 * (2 * m) + dw
                    y = R + 4 * (2 * m + 1) + dw
                    w(f"  v_perm_b32 v{T + 4*(2*dw) + m}, v{y}, v{x}, s{sSelLo}")
                    w(f"  v_perm_b32 v{T + 4*(2*dw+1) + m}, v{y}, v{x}, s{sSelHi}")
                loads(st, u, rows=(2 * m, 2 * m + 1))
            for j in range(8):
                w(f"  v_mfma_f32_16x16x32_bf16 {vr(accf(j))}, {vr(areg)}, {vr(T+4*j)}, {vr(accf(j))}")
            if u == 0:
                loadA()

    def after_body():
        w(f"  s_mov_b32 s{sCur}, s{sNxt}")
        w(f"  s_cmp_lt_u32 s{sCur}, {NBLK}")
        w("  s_cbranch_scc1 L_loop")
        w(f"  s_cmp_eq_u32 s{sDump}, 0")
        w("  s_cbranch_scc1 L_dumpK")

    body(first=True)
    after_body()
    w("  s_branch L_chk")
    w("L_loop:")
    body()
    after_body()
    w("L_chk:")
    w(f"  s_cmp_lt_u32 s{sCur}, {2*NBLK}")
    w("  s_cbranch_scc1 L_loop")
    w("  s_branch L_tail")

    def dump():
        w("  s_nop 7")
        w("  s_nop 1")
        for j in range(8):
            w(f"  ds_write_b128 v{vWP}, {vr(accP(j))} offset:{j*JS}")
        w(f"  s_mov_b64 exec, s[{sExQ}:{sExQ+1}]")
        for j in range(8):
            w(f"  ds_write_b128 v{vWQ}, {vr(accQ(j))} offset:{j*JS}")
        w("  s_mov_b64 exec, -1")

    if fc:
        for tag in ("f", "l"):
            w(f"L_stall_{tag}:")
            w(f"  s_cmp_ge_u32 s{sNxt}, {2*NBLK}")
            w(f"  s_cbranch_scc1 L_cont_{tag}")
            w(f"  s_cmp_lg_u32 s{sOff}, 0")
            w(f"  s_cbranch_scc1 L_cont_{tag}")
            w(f"  s_mov_b32 s{sTry}, 0")
            w(f"L_st_{tag}:")
            w(f"  s_sleep {ssleep}")
            w(f"  ds_read_b32 v{vLIM}, v{vCT} offset:12")
            w("  s_waitcnt lgkmcnt(0)")
            w(f"  v_readfirstlane_b32 s{sLim}, v{vLIM}")
            w("  s_nop 3")
            w(f"  s_cmp_le_u32 s{sNxt}, s{sLim}")
            w(f"  s_cbranch_scc1 L_cont_{tag}")
            w(f"  s_add_u32 s{sTry}, s{sTry}, 1")
            w(f"  s_cmp_lt_u32 s{sTry}, {maxtry}")
            w(f"  s_cbranch_scc1 L_st_{tag}")
            w(f"  s_mov_b32 s{sOff}, 1")
            w(f"  s_branch L_cont_{tag}")

        w("L_ctrl:")
        init_counters()
        w("  s_barrier")
        w("  s_setprio 3")
        w("  s_mov_b32 s62, s78")
        w("  s_mov_b32 s63, s79")
        if xcc == 2:
            w("  s_getreg_b32 s84, hwreg(HW_REG_XCC_ID, 0, 4)")
            w("  s_and_b32 s84, s84, 7")
            w("  s_getreg_b32 s85, hwreg(HW_REG_HW_ID, 8, 8)")
            w("  s_memrealtime s[90:91]")
        if xcc == 1:
            SG = 80
            w(f"  s_mov_b32 s{SG}, s76")
            w(f"  s_and_b32 s{SG+1}, s77, 0xffff")
            w(f"  s_mov_b32 s{SG+2}, 256")
            w(f"  s_mov_b32 s{SG+3}, 0x00020000")
            w("  s_getreg_b32 s84, hwreg(HW_REG_XCC_ID, 0, 4)")
            w("  s_and_b32 s84, s84, 7")
            w("  s_lshl_b32 s85, s84, 2")
            w("  v_mov_b32 v7, 1")
            w("  s_mov_b64 exec, 1")
            w(f"  buffer_atomic_add v7, off, s[{SG}:{SG+3}], s85 sc0")
            w("  s_mov_b64 exec, -1")
        if tlbpf:
            w(f"  s_mul_i32 s{sTmp}, s2, {HEADB}")
            w(f"  s_add_u32 s{SN}, s6, s{sTmp}")
            w(f"  s_addc_u32 s{SN+1}, s7, 0")
            w(f"  s_and_b32 s{SN+1}, s{SN+1}, 0xffff")
            w(f"  s_mov_b32 s{SN+2}, {HEADB}")
            w(f"  s_mov_b32 s{SN+3}, 0x00020000")
            w(f"  s_add_u32 s{SA}, s8, s{sTmp}")
            w(f"  s_addc_u32 s{SA+1}, s9, 0")
            w(f"  s_and_b32 s{SA+1}, s{SA+1}, 0xffff")
            w(f"  s_mov_b32 s{SA+2}, {HEADB}")
            w(f"  s_mov_b32 s{SA+3}, 0x00020000")
            w(f"  v_lshlrev_b32 v12, 18, v{L}")
            w(f"  buffer_load_dword v13, v12, s[{SA}:{SA+3}], 0 offen nt")
            w(f"  buffer_load_dword v14, v12, s[{SN}:{SN+3}], 0 offen nt")
        gsh = GS.bit_length() - 1
        sGrp, sMem, sAll = 86, 87, 88
        sTag = 89
        if xcc == 2:
            assert GS == 8
            w(f"  s_mov_b32 s{sGrp}, s85")
            w(f"  s_mov_b32 s{sMem}, s84")
            w("  s_waitcnt lgkmcnt(0)")
            w(f"  s_lshr_b32 s{sTag}, s90, 10")
            w(f"  s_and_b32 s{sTag}, s{sTag}, 0xffff")
            w(f"  s_lshl_b32 s92, s{sTag}, 16")
            w(f"  s_sub_u32 s93, 2, s{sTag}")
        elif xcc == 1:
            assert GS == 8
            w("  s_waitcnt vmcnt(0)")
            w(f"  v_readfirstlane_b32 s{sGrp}, v7")
            w(f"  s_mov_b32 s{sMem}, s84")
            w(f"  s_mov_b32 s{sAll}, 0")
            w("  s_nop 3")
        else:
            w(f"  s_lshr_b32 s{sGrp}, s{sWG}, {gsh}")
            w(f"  s_and_b32 s{sMem}, s{sWG}, {GS-1}")
            w(f"  s_mov_b32 s{sAll}, 1")
        GSTR = GS*lstride+256
        w(f"  s_min_u32 s{sGrp}, s{sGrp}, 255")
        w(f"  s_mul_i32 s{sTry}, s{sGrp}, {GSTR}")
        w(f"  s_add_u32 s{SD}, s62, {WSOFF}")
        w(f"  s_addc_u32 s{SD+1}, s63, 0")
        w(f"  s_and_b32 s{SD+1}, s{SD+1}, 0xffff")
        if not full:
            w(f"  s_mov_b32 s{SD+2}, 32")
            w(f"  s_mov_b32 s{SD+3}, 0x00020000")
            w(f"  s_and_b32 s{sSlot}, s{sWG}, 7")
            w(f"  s_lshl_b32 s{sSlot}, s{sSlot}, 2")
            w(f"  v_and_b32 v1, 7, v{L}")
            w("  v_lshlrev_b32 v1, 2, v1")
        else:
            w(f"  s_mov_b32 s{SD+2}, {256*GSTR}")
            w(f"  s_mov_b32 s{SD+3}, 0x00020000")
            w(f"  s_mul_i32 s{sSlot}, s{sMem}, {lstride}")
            w(f"  s_add_u32 s{sSlot}, s{sSlot}, s{sTry}")
            w(f"  v_and_b32 v1, 7, v{L}")
            w(f"  v_lshlrev_b32 v6, 4, v1")
            w(f"  v_and_b32 v1, {GS-1}, v{L}")
            w(f"  v_mul_u32_u24 v1, {lstride}, v1")
        if pfd:
            w(f"  s_mov_b32 s95, {2*NW}")
            w(f"  s_mov_b32 s74, {HEADB}")
            w(f"  s_mov_b32 s75, 0x00020000")
            w(f"  s_mul_i32 s{sStag}, s2, {stag}")
            w(f"  v_mul_u32_u24 v16, {pfs}, v{L}")
        w(f"  v_lshrrev_b32 v12, 4, v6")
        w(f"  v_lshlrev_b32 v12, 2, v12")
        w(f"  s_mul_i32 s{sTmp}, s{sGrp}, {phm}")
        if xcc == 2:
            w(f"  s_lshr_b32 s{sTmp2}, s{sGrp}, 5")
            w(f"  s_mul_i32 s{sTmp2}, s{sTmp2}, 9")
            w(f"  s_add_u32 s{sTmp}, s{sTmp}, s{sTmp2}")
        w(f"  s_and_b32 s{sTmp}, s{sTmp}, {S1-1}")
        w(f"  s_sub_u32 s{sLast}, {S1}, s{sTmp}")
        if xcc == 2:
            w(f"  s_or_b32 s94, s{sLast}, s92")
        else:
            w(f"  s_mov_b32 s94, s{sLast}")
        w(f"  v_mov_b32 v8, s94")
        w(f"  v_mov_b32 v9, s94")
        w(f"  v_mov_b32 v10, s94")
        w(f"  v_mov_b32 v11, s94")
        w(f"  s_mov_b64 exec, 255")
        if cst:
            w(f"  buffer_store_dwordx4 v[8:11], v6, s[{SD}:{SD+3}], s{sSlot} offen {stpol}" if not swap else f"  s_mov_b64 exec, 1\n  buffer_atomic_swap v8, off, s[{SD}:{SD+3}], s{sSlot}")
        w("  s_mov_b64 exec, -1")
        w("L_cl:")
        w(f"  ds_read_b32 v2, v{vCT}")
        w("  s_waitcnt lgkmcnt(0)")
        w(f"  v_readfirstlane_b32 s{sNxt}, v2")
        w("  s_nop 3")
        w(f"  s_cmp_ge_u32 s{sNxt}, {2*NBLK}")
        w("  s_cbranch_scc1 L_cfin")
        w(f"  s_cmp_lt_u32 s{sNxt}, s{sLast}")
        w("  s_cbranch_scc1 L_cnopub")
        w(f"  s_cmp_ge_u32 s{sLast}, {SW}")
        w(f"  s_cselect_b32 s{sTmp}, {S2}, {S1}")
        if S3:
            w(f"  s_cmp_ge_u32 s{sLast}, {SW3}")
            w(f"  s_cselect_b32 s{sTmp}, {S3}, s{sTmp}")
        w(f"  s_add_u32 s{sLast}, s{sLast}, s{sTmp}")
        w("L_cpub:")
        if xcc == 2:
            w(f"  s_or_b32 s94, s{sLast}, s92")
        else:
            w(f"  s_mov_b32 s94, s{sLast}")
        w(f"  v_mov_b32 v8, s94")
        w(f"  v_mov_b32 v9, s94")
        w(f"  v_mov_b32 v10, s94")
        w(f"  v_mov_b32 v11, s94")
        w(f"  s_mov_b64 exec, 255")
        if cst:
            w(f"  buffer_store_dwordx4 v[8:11], v6, s[{SD}:{SD+3}], s{sSlot} offen {stpol}" if not swap else f"  s_mov_b64 exec, 1\n  buffer_atomic_swap v8, off, s[{SD}:{SD+3}], s{sSlot}")
        w("  s_mov_b64 exec, -1")
        w("L_cnopub:")
        w(f"  buffer_load_dword v4, v1, s[{SD}:{SD+3}], s{sTry} offen {ldpol}")
        if pfd:
            w(f"  s_add_u32 s{sTmp2}, s{sNxt}, {pfd}")
            w(f"  s_min_u32 s{sTmp2}, s{sTmp2}, {2*NBLK}")
            w("L_pf:")
            w(f"  s_cmp_ge_u32 s95, s{sTmp2}")
            w("  s_cbranch_scc1 L_pfdone")
            w(f"  s_cmp_ge_u32 s95, {NBLK}")
            w(f"  s_cselect_b32 s72, s{SA}, s{SN}")
            w(f"  s_cselect_b32 s73, s{SA+1}, s{SN+1}")
            w(f"  s_add_u32 s{sTmp}, s95, s{sStag}")
            w(f"  s_and_b32 s{sTmp}, s{sTmp}, {NBLK-1}")
            w(f"  s_mul_i32 s{sTmp}, s{sTmp}, {BLKB}")
            w(f"  s_mov_b64 exec, {(1<<pfl)-1}")
            w(f"  buffer_load_dword v15, v16, s[72:75], s{sTmp} offen nt")
            w("  s_mov_b64 exec, -1")
            w("  s_add_u32 s95, s95, 1")
            w("  s_branch L_pf")
            w("L_pfdone:")
        if xcc == 2:
            w("  s_waitcnt vmcnt(0)")
            w("  v_lshrrev_b32 v13, 16, v4")
            w("  v_add_u32 v13, s93, v13")
            w("  v_and_b32 v13, 0xffff, v13")
            w("  v_and_b32 v4, 0xffff, v4")
            w("  v_cmp_ge_u32 vcc, 4, v13")
            w("  v_mov_b32 v14, 255")
            w("  s_nop 0")
            w("  v_cndmask_b32 v4, v14, v4, vcc")
        if xcc == 1:
            w(f"  s_cmp_lg_u32 s{sAll}, 0")
            w("  s_cbranch_scc1 L_call")
            w(f"  buffer_load_dword v13, v12, s[{SG}:{SG+3}], 0 offen sc1")
            w("  s_waitcnt vmcnt(0)")
            w(f"  v_cmp_lt_u32 vcc, s{sGrp}, v13")
            w("  v_mov_b32 v14, 255")
            w("  s_nop 0")
            w("  v_cndmask_b32 v4, v14, v4, vcc")
            w("  s_cmp_eq_u64 vcc, -1")
            w(f"  s_cselect_b32 s{sAll}, 1, 0")
            w("L_call:")
        w("  s_waitcnt vmcnt(0)")
        if GS > 8:
            for sh in (1, 2, 4, 8):
                w("  s_nop 1")
                w(f"  v_min_u32_dpp v4, v4, v4 row_ror:{sh} row_mask:0xf bank_mask:0xf")
            w("  s_nop 1")
            nrow = GS // 16
            for i in range(nrow):
                w(f"  v_readlane_b32 s{64+i}, v4, {16*i}")
            w("  s_nop 3")
            for i in range(1, nrow):
                w(f"  s_min_u32 s64, s64, s{64+i}")
        else:
            for i in range(8):
                w(f"  v_readlane_b32 s{64+i}, v4, {i}")
            w("  s_nop 3")
            for i in range(1, 8):
                w(f"  s_min_u32 s64, s64, s{64+i}")
        w(f"  s_min_u32 s64, s64, 250")
        w(f"  s_add_u32 s64, s64, {D}")
        w("  v_mov_b32 v5, s64")
        w("  s_mov_b64 exec, 1")
        w(f"  ds_write_b32 v{vCT}, v5 offset:12")
        w("  s_mov_b64 exec, -1")
        if csleep:
            w(f"  s_sleep {csleep}")
        w("  s_branch L_cl")
        w("L_cfin:")
        if xcc == 2:
            w(f"  s_or_b32 s94, 255, s92")
        else:
            w(f"  s_mov_b32 s94, 255")
        w(f"  v_mov_b32 v8, s94")
        w(f"  v_mov_b32 v9, s94")
        w(f"  v_mov_b32 v10, s94")
        w(f"  v_mov_b32 v11, s94")
        w(f"  s_mov_b64 exec, 255")
        if cst:
            w(f"  buffer_store_dwordx4 v[8:11], v6, s[{SD}:{SD+3}], s{sSlot} offen {stpol}" if not swap else f"  s_mov_b64 exec, 1\n  buffer_atomic_swap v8, off, s[{SD}:{SD+3}], s{sSlot}")
        w("L_cexit:")
        w("  v_mov_b32 v5, 255")
        w("  s_mov_b64 exec, 1")
        w(f"  ds_write_b32 v{vCT}, v5 offset:12")
        w("  s_endpgm")

    def reduce_partials(dst, va):
        for p in range(8):
            w(f"  ds_read_b128 {vr(T+4*p)}, v{va} offset:{p*PS}")
        for p in range(8):
            w(f"  s_waitcnt lgkmcnt({7-p})")
            for e in range(4):
                if p == 0:
                    w(f"  v_mov_b32 v{dst+e}, v{T+4*p+e}")
                else:
                    w(f"  v_add_f32 v{dst+e}, v{dst+e}, v{T+4*p+e}")

    w("L_dumpK:")
    stamp(3)
    w(f"  s_mov_b32 s{sDump}, 1")
    dump()
    w("  s_mov_b64 exec, 1")
    w(f"  ds_add_rtn_u32 v{vCL}, v{vCT}, v{vOne} offset:4")
    w("  s_mov_b64 exec, -1")
    for r in range(64):
        w(f"  v_mov_b32 v{ACC+r}, 0")
    w("  s_waitcnt lgkmcnt(0)")
    w(f"  v_readfirstlane_b32 s{sTmp}, v{vCL}")
    w("  s_nop 3")
    w(f"  s_cmp_lg_u32 s{sTmp}, {NW-1}")
    w("  s_cbranch_scc1 L_chk")
    SUM = ALO
    VA, VK = AHI, AHI+2
    w(f"  v_mov_b32 v{VA}, v{vRD}")
    w(f"  v_mov_b32 v{VK}, v{vKW}")
    w(f"  s_mov_b32 s{sPi}, 0")
    w("L_kred:")
    reduce_partials(SUM, VA)
    w(f"  v_cvt_pk_bf16_f32 v{T}, v{SUM}, v{SUM+1}")
    w(f"  v_cvt_pk_bf16_f32 v{T+1}, v{SUM+2}, v{SUM+3}")
    w(f"  ds_write_b16 v{VK}, v{T} offset:0")
    w(f"  ds_write_b16_d16_hi v{VK}, v{T} offset:{KPROW}")
    w(f"  ds_write_b16 v{VK}, v{T+1} offset:{2*KPROW}")
    w(f"  ds_write_b16_d16_hi v{VK}, v{T+1} offset:{3*KPROW}")
    w(f"  v_add_u32 v{VA}, 64, v{VA}")
    w(f"  v_add_u32 v{VK}, 64, v{VK}")
    w(f"  s_add_u32 s{sPi}, s{sPi}, 1")
    w(f"  s_cmp_lt_u32 s{sPi}, 6")
    w("  s_waitcnt lgkmcnt(0)")
    w("  s_cbranch_scc1 L_kred")
    S = T + 24
    for e in range(4):
        w(f"  v_mov_b32 v{S+e}, 0")
    for t in range(6):
        w(f"  ds_read_b128 {vr(T+4*t)}, v{vKR} offset:{t*64}")
    w("  s_waitcnt vmcnt(25)")
    for t in range(6):
        w(f"  s_waitcnt lgkmcnt({5-t})")
        w(f"  v_mfma_f32_16x16x32_bf16 {vr(S)}, {vr(T+4*t)}, {vr(QF+4*t)}, {vr(S)}")
    w("  s_nop 7")
    w("  s_nop 1")
    w(f"  s_mov_b32 s{sC0}, 0x3d93cd3a")
    w(f"  s_mov_b32 s{sC1}, 0x3fb8aa3b")
    X = T
    for rep in range(2):
        w(f"  v_cvt_pk_bf16_f32 v{X}, v{S}, v{S+1}")
        w(f"  v_cvt_pk_bf16_f32 v{X+1}, v{S+2}, v{S+3}")
        w(f"  v_lshlrev_b32 v{S}, 16, v{X}")
        w(f"  v_and_b32 v{S+1}, 0xffff0000, v{X}")
        w(f"  v_lshlrev_b32 v{S+2}, 16, v{X+1}")
        w(f"  v_and_b32 v{S+3}, 0xffff0000, v{X+1}")
        if rep == 0:
            for e in range(4):
                w(f"  v_mul_f32 v{S+e}, s{sC0}, v{S+e}")
    w(f"  v_max_f32 v{X}, v{S}, v{S+1}")
    w(f"  v_max3_f32 v{X}, v{X}, v{S+2}, v{S+3}")
    w(f"  ds_swizzle_b32 v{X+1}, v{X} offset:0x401F")
    w("  s_waitcnt lgkmcnt(0)")
    w(f"  v_max_f32 v{X}, v{X}, v{X+1}")
    for e in range(4):
        w(f"  v_sub_f32 v{S+e}, v{S+e}, v{X}")
    for e in range(4):
        w(f"  v_mul_f32 v{S+e}, s{sC1}, v{S+e}")
    for e in range(4):
        w(f"  v_exp_f32 v{S+e}, v{S+e}")
    w("  s_nop 0")
    w(f"  v_add_f32 v{X}, v{S}, v{S+1}")
    w(f"  v_add_f32 v{X+1}, v{S+2}, v{S+3}")
    w(f"  v_add_f32 v{X}, v{X}, v{X+1}")
    w(f"  ds_swizzle_b32 v{X+1}, v{X} offset:0x401F")
    w("  s_waitcnt lgkmcnt(0)")
    w(f"  v_add_f32 v{X}, v{X}, v{X+1}")
    w(f"  v_rcp_f32 v{X}, v{X}")
    w("  s_nop 0")
    for e in range(4):
        w(f"  v_mul_f32 v{S+e}, v{S+e}, v{X}")
    w(f"  v_cvt_pk_bf16_f32 v{X}, v{S}, v{S+1}")
    w(f"  v_cvt_pk_bf16_f32 v{X+1}, v{S+2}, v{S+3}")
    w(f"  ds_write_b64 v{vPF}, {vr(X,2)}")
    w("  s_mov_b64 exec, 1")
    w(f"  ds_write_b32 v{vCT}, v{vOne} offset:8")
    w("  s_mov_b64 exec, -1")
    w("  s_waitcnt lgkmcnt(0)")
    w("  s_branch L_chk")

    if lastbody:
        w("L_last:")
        body_last()
        w(f"  s_mov_b32 s{sCur}, s{sNxt}")
        w(f"  s_cmp_eq_u32 s{sDump}, 0")
        w("  s_cbranch_scc1 L_dumpK")
    w("L_tail:")
    stamp(4)
    w("L_spin:")
    w(f"  ds_read_b32 v{vCL}, v{vCT} offset:8")
    w("  s_waitcnt lgkmcnt(0)")
    w(f"  v_readfirstlane_b32 s{sTmp}, v{vCL}")
    w("  s_nop 3")
    w(f"  s_cmp_lg_u32 s{sTmp}, 0")
    w("  s_cbranch_scc1 L_go")
    w("  s_sleep 1")
    w("  s_branch L_spin")
    w("L_go:")
    dump()
    PB = QF
    w(f"  ds_read_b64 {vr(PB,2)}, v{vPF}")
    w("  s_mov_b64 exec, 1")
    w(f"  ds_add_u32 v{vCT}, v{vOne} offset:16")
    w("  s_mov_b64 exec, -1")
    w(f"  s_mul_i32 s{sTmp}, s{sW}, 96")
    w(f"  v_add_u32 v{vRD}, s{sTmp}, v{vRD}")
    w(f"  v_add_u32 v{vRD2}, s{sTmp}, v{vRD2}")
    w("L_vspin:")
    w(f"  ds_read_b32 v{vCL}, v{vCT} offset:16")
    w("  s_waitcnt lgkmcnt(0)")
    w(f"  v_readfirstlane_b32 s{sTmp}, v{vCL}")
    w("  s_nop 3")
    w(f"  s_cmp_lt_u32 s{sTmp}, {NW}")
    w("  s_cbranch_scc1 L_vspin")
    BA = ACC
    BB = ACC + 32
    for p in range(8):
        w(f"  ds_read_b128 {vr(BA+4*p)}, v{vRD} offset:{p*PS}")
    for p in range(4):
        w(f"  ds_read_b128 {vr(BB+4*p)}, v{vRD2} offset:{p*PS}")
    w(f"  v_cndmask_b32 v{PB+2}, 0, v{PB}, s[{sG01}:{sG01+1}]")
    w(f"  v_cndmask_b32 v{PB+3}, 0, v{PB+1}, s[{sG01}:{sG01+1}]")
    w(f"  v_cndmask_b32 v{PB+4}, 0, v{PB}, s[{sG23}:{sG23+1}]")
    w(f"  v_cndmask_b32 v{PB+5}, 0, v{PB+1}, s[{sG23}:{sG23+1}]")
    for p in range(1, 8):
        w(f"  s_waitcnt lgkmcnt({11-p})")
        for e in range(4):
            w(f"  v_add_f32 v{BA+e}, v{BA+e}, v{BA+4*p+e}")
    Dd = T
    w(f"  v_cvt_pk_bf16_f32 v{Dd}, v{BA}, v{BA+1}")
    w(f"  v_cvt_pk_bf16_f32 v{Dd+1}, v{BA+2}, v{BA+3}")
    for p in range(1, 4):
        w(f"  s_waitcnt lgkmcnt({3-p})")
        for e in range(4):
            w(f"  v_add_f32 v{BB+e}, v{BB+e}, v{BB+4*p+e}")
    w(f"  v_mfma_f32_16x16x16_bf16 {vr(Dd+8)}, {vr(Dd,2)}, {vr(PB+2,2)}, 0")
    w(f"  v_mfma_f32_16x16x16_bf16 {vr(Dd+12)}, {vr(Dd,2)}, {vr(PB+4,2)}, 0")
    for e in range(4):
        w(f"  v_mov_b32 v{BB+4+e}, v{BB+e}")
    w("  s_nop 1")
    for e in range(4):
        w(f"  v_permlane32_swap_b32 v{BB+e}, v{BB+4+e}")
    w("  s_nop 1")
    for e in range(4):
        w(f"  v_add_f32 v{BB+e}, v{BB+e}, v{BB+4+e}")
    w(f"  v_cvt_pk_bf16_f32 v{Dd+2}, v{BB}, v{BB+1}")
    w(f"  v_cvt_pk_bf16_f32 v{Dd+3}, v{BB+2}, v{BB+3}")
    w(f"  v_cvt_pk_bf16_f32 v{Dd+20}, v{Dd+8}, v{Dd+9}")
    w(f"  v_cvt_pk_bf16_f32 v{Dd+21}, v{Dd+10}, v{Dd+11}")
    w(f"  v_mfma_f32_16x16x16_bf16 {vr(Dd+16)}, {vr(Dd+2,2)}, {vr(PB+2,2)}, 0")
    w(f"  v_cvt_pk_bf16_f32 v{Dd+22}, v{Dd+12}, v{Dd+13}")
    w(f"  v_cvt_pk_bf16_f32 v{Dd+23}, v{Dd+14}, v{Dd+15}")
    w(f"  buffer_store_dwordx2 {vr(Dd+20,2)}, v{vOUT}, s[{SO}:{SO+3}], 0 offen{OPOL}")
    w(f"  buffer_store_dwordx2 {vr(Dd+22,2)}, v{vOUT}, s[{SO}:{SO+3}], 0 offen offset:32{OPOL}")
    w("  s_nop 7")
    w(f"  v_cvt_pk_bf16_f32 v{Dd+24}, v{Dd+16}, v{Dd+17}")
    w(f"  v_cvt_pk_bf16_f32 v{Dd+25}, v{Dd+18}, v{Dd+19}")
    w(f"  buffer_store_dwordx2 {vr(Dd+24,2)}, v{vOUT}, s[{SO}:{SO+3}], 0 offen offset:64{OPOL}")
    if stamps:
        w("  s_waitcnt vmcnt(0)")
        stamp(5)
        w("  s_waitcnt lgkmcnt(0)")
        w(f"  s_mul_i32 s92, s3, {NW}")
        w(f"  s_add_u32 s92, s92, s{sW}")
        w("  s_lshl_b32 s92, s92, 5")
        w("  s_add_u32 s88, s78, s92")
        w("  s_addc_u32 s89, s79, 0")
        w("  s_and_b32 s89, s89, 0xffff")
        w("  s_mov_b32 s90, 32")
        w("  s_mov_b32 s91, 0x00020000")
        for i in range(6):
            w(f"  v_mov_b32 v{ACC+i}, s{64+2*i}")
        w(f"  v_mov_b32 v{ACC+8}, 0")
        w("  s_mov_b64 exec, 1")
        w(f"  buffer_store_dwordx4 {vr(ACC)}, v{ACC+8}, s[88:91], 0 offen")
        w(f"  buffer_store_dwordx2 {vr(ACC+4,2)}, v{ACC+8}, s[88:91], 0 offen offset:16")
    if tlog:
        w("  s_memrealtime s[64:65]")
        w("  s_waitcnt lgkmcnt(0)")
        w(f"  s_mov_b32 m0, s{sIter}"); w(f"  v_writelane_b32 v{vLOG}, s64, m0")
        w(f"  s_mul_i32 s92, s3, {NW}")
        w(f"  s_add_u32 s92, s92, s{sW}")
        w("  s_lshl_b32 s92, s92, 8")
        w("  s_add_u32 s88, s78, s92")
        w("  s_addc_u32 s89, s79, 0")
        w("  s_and_b32 s89, s89, 0xffff")
        w("  s_mov_b32 s90, 256")
        w("  s_mov_b32 s91, 0x00020000")
        w("  v_and_b32 v0, 63, v0")
        w("  v_lshlrev_b32 v0, 2, v0")
        w(f"  buffer_store_dword v{vLOG}, v0, s[88:91], 0 offen")
    w("L_end:")
    w("  s_endpgm")
    w('.section .rodata,"a"')
    w(".p2align 6")
    w(f".amdhsa_kernel {KNAME}")
    w(f"  .amdhsa_next_free_vgpr {NV}")
    w("  .amdhsa_next_free_sgpr 102")
    w(f"  .amdhsa_accum_offset {(NV+3)//4*4}")
    w("  .amdhsa_group_segment_fixed_size 0")
    w("  .amdhsa_kernarg_size 64")
    w("  .amdhsa_user_sgpr_count 2")
    w("  .amdhsa_user_sgpr_kernarg_segment_ptr 1")
    w("  .amdhsa_system_sgpr_workgroup_id_x 1")
    w(".end_amdhsa_kernel")
    return "\n".join(o) + "\n"


if __name__ == "__main__":
    out = sys.argv[1] if len(sys.argv) > 1 else "standalone__low_rank_proj_linformer__sampling.s"
    kw = {}
    for a in sys.argv[2:]:
        k_, v_ = a.split("=")
        try:
            kw[k_] = int(v_)
        except ValueError:
            kw[k_] = v_.replace("+", " ")
    open(out, "w").write(gen(**kw))
```

```python
import sys

KNAME = "standalone__low_rank_proj_linformer__sampling_kernel"

HEADER = """; Kernarg layout for this problem (64 bytes, ptrs only, base s[0:1]):
"""

DOC = """
Linformer low-rank projection attention, one workgroup per (batch, head); generated by a hand-written Python generator.
  kp = E.K, vp = F.V  (8 x 192 each, reduction over 4096 rows), P = softmax(Q.kp^T / sqrt(192)), O = P.vp
Waves 0-3 stream K then V (non-temporal dwordx4 loads) in blocks of 64 rows claimed from an LDS counter; the start
block is staggered per head.  A block is three 8-load units; each lane transposes its 8x8 bf16 tile with v_perm and
feeds v_mfma_f32_16x16x32_bf16 with A = rows of E/F (rows 0-7 <-> first 32 rows of the block, rows 8-15 <-> last 32).
Per-wave partial sums meet in LDS: the last wave to finish K reduces kp and computes the softmax probabilities while
the others keep streaming V; at the end all four waves reduce vp, apply P with v_mfma_f32_16x16x16_bf16 and store O.
Wave 4 is a control wave: it publishes this workgroup's progress at a few checkpoints (d_ws, tagged per launch) and
reads the progress of the 7 workgroups on the same CU slot of the other XCDs, so that no XCD runs far ahead of the
others in the shared HBM queue (bounded, performance-only flow control; results never depend on it).
"""


def gen(nt=1, stamps=0, stag=1, minlds=84000, hmap=0, fc=1, D=6, maxtry=4096, csleep=4, ssleep=1, cst=1, cld=1, stpol='sc1', ldpol='sc1', gstride=1280, pubstep=2, full=1, lstride=128, S1=16, S2=8, SW=96, phm=5, tlbpf=1, lastbody=1, GS=8, S3=0, SW3=116, xcc=0, opol='', tlog=0, swap=0, pfd=0, pfl=6, pfs=4096, qpol='', apol=''):
    NW = 4
    o = []
    w = o.append
    NT = " nt" if nt else ""
    OPOL = (" " + opol) if opol else ""

    def stamp(i):
        if stamps:
            w(f"  s_memrealtime s[{64+2*i}:{65+2*i}]")

    HEADB = 4096 * 384
    BLKB = 64 * 384
    NBLK = 64
    JS = 26 * 16
    RS = 8 * JS
    PS = 2 * RS
    NPART = 2 * NW
    KPB = NPART * PS
    KPROW = 400
    PFR = KPB + 8 * KPROW
    CTR = PFR + 512
    LDS = CTR + 32
    LDS = max(LDS, minlds)
    LDS = (LDS + 255) // 256 * 256
    WSOFF = 1 << 20

    vS = [1, 2, 3]
    vA = 4
    vWP, vWQ, vRD = 5, 6, 7
    vKW, vKR, vOUT, vRD2 = 8, 9, 10, 11
    ARAW, ALO, AHI = 12, 16, 20
    T = 24
    QF = 56
    vCL, vCT, vPF, vOne = 80, 81, 82, 83
    ACC = 84
    RING = 148
    vLIM = RING + 96
    vLOG = RING + 97
    NV = RING + 100
    sIter = 101

    def accP(j): return ACC + 4 * j
    def accQ(j): return ACC + 32 + 4 * j
    def vr(b, n=4): return f"v[{b}:{b+n-1}]"

    SN, SA, SQ, SO = 16, 20, 24, 28
    sKb, sVb = 32, 34
    sW, sCur, sOffN, sOffA = 36, 37, 38, 39
    sSelLo, sSelHi = 40, 41
    sMLo, sMHi = 42, 44
    sTmp, sTmp2 = 46, 47
    sExQ = 48
    sG01, sG23 = 50, 52
    sC0, sC1 = 54, 55
    sNxt, sDump, sPi, sStag = 56, 57, 58, 59
    SD = 60
    sLim, sTry, sOff, sSlot, sLast = 96, 97, 98, 99, 100
    sWG = 3

    nthreads = (NW + (1 if fc else 0)) * 64
    w(HEADER.rstrip("\n"))
    w(f"; @launch grid=(256,1,1) block=({nthreads},1,1) lds={LDS}")
    w('.amdgcn_target "amdgcn-amd-amdhsa--gfx950"')
    for line in DOC.strip("\n").split("\n"):
        w("; " + line)
    w(".text")
    w(f".globl {KNAME}")
    w(".p2align 8")
    w(f".type {KNAME},@function")
    w(f"{KNAME}:")
    w("  s_cmp_ge_u32 s2, 256")
    w("  s_cbranch_scc1 L_end")
    stamp(0)
    w("  s_mov_b32 s3, s2")
    if hmap == 1:
        w("  s_lshr_b32 s60, s3, 3")
        w("  s_and_b32 s61, s3, 7")
        w("  s_lshl_b32 s61, s61, 5")
        w("  s_add_u32 s2, s60, s61")
    w("  s_load_dwordx8 s[4:11], s[0:1], 0")
    w("  s_load_dwordx4 s[12:15], s[0:1], 32")
    w("  s_load_dwordx4 s[76:79], s[0:1], 48")
    L, WV, G, C, CC, HF, G16, C16, G3K = T, T+1, T+2, T+3, T+4, T+5, T+6, T+7, T+8
    w(f"  v_and_b32 v{L}, 63, v0")
    w(f"  v_lshrrev_b32 v{WV}, 6, v0")
    w(f"  v_lshrrev_b32 v{G}, 4, v{L}")
    w(f"  v_and_b32 v{C}, 15, v{L}")
    w(f"  v_readfirstlane_b32 s{sW}, v{WV}")
    w(f"  v_mul_u32_u24 v{G3K}, 3072, v{G}")
    w(f"  v_lshlrev_b32 v{C16}, 4, v{C}")
    w(f"  v_mov_b32 v{vCT}, {CTR}")
    w(f"  v_mov_b32 v{vOne}, 1")
    if fc:
        w(f"  s_cmp_eq_u32 s{sW}, {NW}")
        w("  s_cbranch_scc1 L_ctrl")
    w(f"  v_add_u32 v{vS[0]}, v{G3K}, v{C16}")
    w(f"  v_add_u32 v{vS[2]}, {12288+128}, v{vS[0]}")
    w(f"  v_and_b32 v{CC}, 7, v{C}")
    w(f"  v_lshrrev_b32 v{HF}, 3, v{C}")
    w(f"  v_lshlrev_b32 v{T+9}, 4, v{CC}")
    w(f"  v_add_u32 v{T+9}, v{G3K}, v{T+9}")
    w(f"  v_mul_u32_u24 v{T+10}, {12288-256}, v{HF}")
    w(f"  v_add_u32 v{T+9}, v{T+9}, v{T+10}")
    w(f"  v_add_u32 v{vS[1]}, 256, v{T+9}")
    w(f"  v_lshlrev_b32 v{T+9}, 13, v{CC}")
    w(f"  v_lshlrev_b32 v{T+10}, 6, v{HF}")
    w(f"  v_lshlrev_b32 v{G16}, 4, v{G}")
    w(f"  v_add3_u32 v{vA}, v{T+9}, v{T+10}, v{G16}")
    w(f"  s_mul_i32 s{sTmp}, s2, {HEADB}")
    w(f"  s_mul_i32 s{sStag}, s2, {stag}")
    w(f"  s_add_u32 s{sTmp2}, s{sStag}, s{sW}")
    w(f"  s_and_b32 s{sTmp2}, s{sTmp2}, {NBLK-1}")
    w(f"  s_mul_i32 s{sOffN}, s{sTmp2}, {BLKB}")
    w(f"  s_lshl_b32 s{sOffA}, s{sTmp2}, 7")
    w(f"  s_mov_b32 s{SN+2}, {HEADB}")
    w(f"  s_mov_b32 s{SN+3}, 0x00020000")
    w(f"  s_mov_b32 s{SA+2}, 65536")
    w(f"  s_mov_b32 s{SA+3}, 0x00020000")
    w("  s_waitcnt lgkmcnt(0)")
    w(f"  s_add_u32 s{sKb}, s6, s{sTmp}")
    w(f"  s_addc_u32 s{sKb+1}, s7, 0")
    w(f"  s_and_b32 s{sKb+1}, s{sKb+1}, 0xffff")
    w(f"  s_mov_b32 s{SN}, s{sKb}")
    w(f"  s_mov_b32 s{SN+1}, s{sKb+1}")
    w(f"  s_mov_b32 s{SA}, s10")
    w(f"  s_and_b32 s{SA+1}, s11, 0xffff")

    def loads(unit_set, ring_slot, rows=range(8)):
        for i in rows:
            w(f"  buffer_load_dwordx4 {vr(RING + 32*ring_slot + 4*i)}, v{vS[unit_set]}, s[{SN}:{SN+3}], s{sOffN} offen offset:{i*384}{NT}")

    def loadA():
        w(f"  buffer_load_dwordx4 {vr(ARAW)}, v{vA}, s[{SA}:{SA+3}], s{sOffA} offen{(' '+apol) if apol else ''}")

    UNITS = [(1, ARAW, accQ), (0, ALO, accP), (2, AHI, accP)]

    loads(UNITS[0][0], 0)
    loadA()
    loads(UNITS[1][0], 1)
    loads(UNITS[2][0], 2)
    stamp(1)
    w(f"  s_add_u32 s{sVb}, s8, s{sTmp}")
    w(f"  s_addc_u32 s{sVb+1}, s9, 0")
    w(f"  s_and_b32 s{sVb+1}, s{sVb+1}, 0xffff")
    w(f"  s_and_b32 s11, s11, 0xffff")
    w(f"  s_and_b32 s13, s13, 0xffff")
    w(f"  s_mul_i32 s{sTmp2}, s2, 6144")
    w(f"  s_add_u32 s{SQ}, s4, s{sTmp2}")
    w(f"  s_addc_u32 s{SQ+1}, s5, 0")
    w(f"  s_and_b32 s{SQ+1}, s{SQ+1}, 0xffff")
    w(f"  s_mov_b32 s{SQ+2}, 6144")
    w(f"  s_mov_b32 s{SQ+3}, 0x00020000")
    w(f"  s_add_u32 s{SO}, s14, s{sTmp2}")
    w(f"  s_addc_u32 s{SO+1}, s15, 0")
    w(f"  s_and_b32 s{SO+1}, s{SO+1}, 0xffff")
    w(f"  s_mov_b32 s{SO+2}, 6144")
    w(f"  s_mov_b32 s{SO+3}, 0x00020000")
    w(f"  s_mov_b32 s{sSelLo}, 0x05040100")
    w(f"  s_mov_b32 s{sSelHi}, 0x07060302")
    w(f"  s_mov_b32 s{sMLo}, 0x00ff00ff")
    w(f"  s_mov_b32 s{sMLo+1}, 0x00ff00ff")
    w(f"  s_mov_b32 s{sMHi}, 0xff00ff00")
    w(f"  s_mov_b32 s{sMHi+1}, 0xff00ff00")
    w(f"  s_mov_b32 s{sExQ}, 0x00ff00ff")
    w(f"  s_mov_b32 s{sExQ+1}, 0xff00ff00")
    w(f"  s_mov_b32 s{sG01}, -1")
    w(f"  s_mov_b32 s{sG01+1}, 0")
    w(f"  s_mov_b32 s{sG23}, 0")
    w(f"  s_mov_b32 s{sG23+1}, -1")
    w(f"  s_mov_b32 s{sCur}, s{sW}")
    w(f"  s_mov_b32 s{sDump}, 0")
    w(f"  s_mov_b32 s{sOff}, 0")
    if tlog:
        w(f"  s_mov_b32 s{sIter}, 0")
        w(f"  v_mov_b32 v{vLOG}, 0")
    QO = T + 11
    w(f"  v_mul_u32_u24 v{QO}, 384, v{C}")
    w(f"  v_add_u32 v{QO}, v{QO}, v{G16}")
    for t in range(6):
        w(f"  buffer_load_dwordx4 {vr(QF+4*t)}, v{QO}, s[{SQ}:{SQ+3}], 0 offen offset:{t*64}{(' '+qpol) if qpol else ''}")
    PART, RH, X1, X2, X3 = T+12, T+13, T+14, T+15, T+16
    w(f"  v_lshrrev_b32 v{PART}, 1, v{G}")
    w(f"  v_and_b32 v{RH}, 1, v{G}")
    w(f"  v_lshlrev_b32 v{X1}, 1, v{WV}")
    w(f"  v_add_u32 v{X1}, v{X1}, v{PART}")
    w(f"  v_mul_u32_u24 v{X1}, {PS}, v{X1}")
    w(f"  v_mul_u32_u24 v{X2}, {RS}, v{RH}")
    w(f"  v_add_u32 v{X1}, v{X1}, v{X2}")
    w(f"  v_lshlrev_b32 v{X3}, 7, v{PART}")
    w(f"  v_add3_u32 v{vWP}, v{X1}, v{X3}, v{C16}")
    w(f"  v_mul_u32_u24 v{X3}, 384, v{PART}")
    w(f"  v_add_u32 v{X1}, v{X1}, v{C16}")
    w(f"  v_add_u32 v{X1}, 256, v{X1}")
    w(f"  v_sub_u32 v{vWQ}, v{X1}, v{X3}")
    w(f"  v_lshlrev_b32 v{X1}, 1, v{PART}")
    w(f"  v_add_u32 v{X1}, v{X1}, v{HF}")
    w(f"  v_lshlrev_b32 v{X1}, 4, v{X1}")
    w(f"  v_mul_u32_u24 v{X3}, {JS}, v{CC}")
    w(f"  v_add3_u32 v{vRD}, v{X1}, v{X3}, v{X2}")
    w(f"  v_lshlrev_b32 v{X1}, 4, v{PART}")
    w(f"  v_add_u32 v{X1}, v{X1}, v{C}")
    w(f"  v_lshlrev_b32 v{X1}, 1, v{X1}")
    w(f"  v_mul_u32_u24 v{X3}, {4*KPROW}, v{RH}")
    w(f"  v_add_u32 v{X3}, {KPB}, v{X3}")
    w(f"  v_add_u32 v{vKW}, v{X1}, v{X3}")
    w(f"  v_mul_u32_u24 v{X3}, {KPROW}, v{CC}")
    w(f"  v_add_u32 v{X3}, {KPB}, v{X3}")
    w(f"  v_add_u32 v{vKR}, v{X3}, v{G16}")
    w(f"  v_mul_u32_u24 v{X1}, 384, v{C}")
    w(f"  v_mul_u32_u24 v{X2}, 96, v{WV}")
    w(f"  v_lshlrev_b32 v{X3}, 3, v{G}")
    w(f"  v_add3_u32 v{vOUT}, v{X1}, v{X2}, v{X3}")
    w(f"  v_mul_u32_u24 v{X1}, {RS}, v{RH}")
    w(f"  v_mul_u32_u24 v{X2}, {JS}, v{CC}")
    w(f"  v_lshlrev_b32 v{X3}, 4, v{HF}")
    w(f"  v_add3_u32 v{X1}, v{X1}, v{X2}, v{X3}")
    w(f"  v_mul_u32_u24 v{X2}, {4*PS}, v{PART}")
    w(f"  v_add_u32 v{X1}, v{X1}, v{X2}")
    w(f"  v_add_u32 v{vRD2}, 64, v{X1}")
    w(f"  v_lshlrev_b32 v{X1}, 3, v{L}")
    w(f"  v_add_u32 v{vPF}, {PFR}, v{X1}")

    def init_counters():
        w(f"  v_mov_b32 v{X1}, {NW}")
        w(f"  v_mov_b32 v{X2}, 0")
        w(f"  v_mov_b32 v{X3}, 0")
        w(f"  v_mov_b32 v{X3+1}, 255")
        w(f"  v_mov_b32 v{X3+2}, 0")
        w(f"  v_mov_b32 v{X3+3}, 0")
        w(f"  ds_write_b128 v{vCT}, {vr(X1)}")
        w(f"  ds_write_b64 v{vCT}, {vr(X3+2,2)} offset:16")
        w("  s_waitcnt lgkmcnt(0)")

    if not fc:
        w(f"  s_cmp_lg_u32 s{sW}, 0")
        w("  s_cbranch_scc1 L_noinit")
        init_counters()
        w("L_noinit:")
    for r in range(64):
        w(f"  v_mov_b32 v{ACC+r}, 0")
    w("  s_barrier")
    if stamps:
        w("  s_waitcnt vmcnt(22)")
        stamp(2)

    def body_last():
        for u, (st, areg, accf) in enumerate(UNITS):
            if u == 1:
                w("  s_waitcnt vmcnt(8)")
            if u == 2:
                w("  s_waitcnt vmcnt(0)")
            R = RING + 32 * u
            for dw in range(4):
                for m in range(4):
                    x = R + 4 * (2 * m) + dw
                    y = R + 4 * (2 * m + 1) + dw
                    w(f"  v_perm_b32 v{T + 4*(2*dw) + m}, v{y}, v{x}, s{sSelLo}")
                    w(f"  v_perm_b32 v{T + 4*(2*dw+1) + m}, v{y}, v{x}, s{sSelHi}")
                if dw >= 1:
                    for j in (2*(dw-1), 2*(dw-1)+1):
                        w(f"  v_mfma_f32_16x16x32_bf16 {vr(accf(j))}, {vr(areg)}, {vr(T+4*j)}, {vr(accf(j))}")
            w("  s_nop 1")
            for j in (6, 7):
                w(f"  v_mfma_f32_16x16x32_bf16 {vr(accf(j))}, {vr(areg)}, {vr(T+4*j)}, {vr(accf(j))}")

    def body(first=False):
        extra = 6 if first else 0
        tag = "f" if first else "l"
        w("  s_mov_b64 exec, 1")
        w(f"  ds_add_rtn_u32 v{vCL}, v{vCT}, v{vOne}")
        w("  s_mov_b64 exec, -1")
        if fc:
            w(f"  ds_read_b32 v{vLIM}, v{vCT} offset:12")
        for u, (st, areg, accf) in enumerate(UNITS):
            n_out = (16 if u == 0 else 17) + extra
            w(f"  s_waitcnt vmcnt({n_out})")
            if u == 0:
                if tlog:
                    w("  s_memrealtime s[64:65]")
                w("  s_waitcnt lgkmcnt(0)")
                if tlog:
                    w(f"  s_mov_b32 m0, s{sIter}"); w(f"  v_writelane_b32 v{vLOG}, s64, m0")
                    w(f"  s_add_u32 s{sIter}, s{sIter}, 1")
                w(f"  v_readfirstlane_b32 s{sNxt}, v{vCL}")
                if fc:
                    w(f"  v_readfirstlane_b32 s{sLim}, v{vLIM}")
                for e in range(4):
                    w(f"  v_cndmask_b32 v{ALO+e}, 0, v{ARAW+e}, s[{sMLo}:{sMLo+1}]")
                    w(f"  v_cndmask_b32 v{AHI+e}, 0, v{ARAW+e}, s[{sMHi}:{sMHi+1}]")
                if lastbody and not first:
                    w(f"  s_cmp_ge_u32 s{sNxt}, {2*NBLK}")
                    w("  s_cbranch_scc1 L_last")
                if fc:
                    w(f"  s_cmp_gt_u32 s{sNxt}, s{sLim}")
                    w(f"  s_cbranch_scc1 L_stall_{tag}")
                    w(f"L_cont_{tag}:")
                w(f"  s_cmp_ge_u32 s{sNxt}, {NBLK}")
                w(f"  s_cselect_b32 s{SN}, s{sVb}, s{sKb}")
                w(f"  s_cselect_b32 s{SN+1}, s{sVb+1}, s{sKb+1}")
                w(f"  s_cselect_b32 s{SA}, s12, s10")
                w(f"  s_cselect_b32 s{SA+1}, s13, s11")
                w(f"  s_cmp_ge_u32 s{sNxt}, {2*NBLK}")
                w(f"  s_cselect_b32 s{SN+2}, 0, {HEADB}")
                w(f"  s_cselect_b32 s{SA+2}, 0, 65536")
                w(f"  s_add_u32 s{sTmp}, s{sNxt}, s{sStag}")
                w(f"  s_and_b32 s{sTmp}, s{sTmp}, {NBLK-1}")
                w(f"  s_mul_i32 s{sOffN}, s{sTmp}, {BLKB}")
                w(f"  s_lshl_b32 s{sOffA}, s{sTmp}, 7")
            R = RING + 32 * u
            for m in range(4):
                for dw in range(4):
                    x = R + 4 * (2 * m) + dw
                    y = R + 4 * (2 * m + 1) + dw
                    w(f"  v_perm_b32 v{T + 4*(2*dw) + m}, v{y}, v{x}, s{sSelLo}")
                    w(f"  v_perm_b32 v{T + 4*(2*dw+1) + m}, v{y}, v{x}, s{sSelHi}")
                loads(st, u, rows=(2 * m, 2 * m + 1))
            for j in range(8):
                w(f"  v_mfma_f32_16x16x32_bf16 {vr(accf(j))}, {vr(areg)}, {vr(T+4*j)}, {vr(accf(j))}")
            if u == 0:
                loadA()

    def after_body():
        w(f"  s_mov_b32 s{sCur}, s{sNxt}")
        w(f"  s_cmp_lt_u32 s{sCur}, {NBLK}")
        w("  s_cbranch_scc1 L_loop")
        w(f"  s_cmp_eq_u32 s{sDump}, 0")
        w("  s_cbranch_scc1 L_dumpK")

    body(first=True)
    after_body()
    w("  s_branch L_chk")
    w("L_loop:")
    body()
    after_body()
    w("L_chk:")
    w(f"  s_cmp_lt_u32 s{sCur}, {2*NBLK}")
    w("  s_cbranch_scc1 L_loop")
    w("  s_branch L_tail")

    def dump():
        w("  s_nop 7")
        w("  s_nop 1")
        for j in range(8):
            w(f"  ds_write_b128 v{vWP}, {vr(accP(j))} offset:{j*JS}")
        w(f"  s_mov_b64 exec, s[{sExQ}:{sExQ+1}]")
        for j in range(8):
            w(f"  ds_write_b128 v{vWQ}, {vr(accQ(j))} offset:{j*JS}")
        w("  s_mov_b64 exec, -1")

    if fc:
        for tag in ("f", "l"):
            w(f"L_stall_{tag}:")
            w(f"  s_cmp_ge_u32 s{sNxt}, {2*NBLK}")
            w(f"  s_cbranch_scc1 L_cont_{tag}")
            w(f"  s_cmp_lg_u32 s{sOff}, 0")
            w(f"  s_cbranch_scc1 L_cont_{tag}")
            w(f"  s_mov_b32 s{sTry}, 0")
            w(f"L_st_{tag}:")
            w(f"  s_sleep {ssleep}")
            w(f"  ds_read_b32 v{vLIM}, v{vCT} offset:12")
            w("  s_waitcnt lgkmcnt(0)")
            w(f"  v_readfirstlane_b32 s{sLim}, v{vLIM}")
            w("  s_nop 3")
            w(f"  s_cmp_le_u32 s{sNxt}, s{sLim}")
            w(f"  s_cbranch_scc1 L_cont_{tag}")
            w(f"  s_add_u32 s{sTry}, s{sTry}, 1")
            w(f"  s_cmp_lt_u32 s{sTry}, {maxtry}")
            w(f"  s_cbranch_scc1 L_st_{tag}")
            w(f"  s_mov_b32 s{sOff}, 1")
            w(f"  s_branch L_cont_{tag}")

        w("L_ctrl:")
        init_counters()
        w("  s_barrier")
        w("  s_setprio 3")
        w("  s_mov_b32 s62, s78")
        w("  s_mov_b32 s63, s79")
        if xcc == 2:
            w("  s_getreg_b32 s84, hwreg(HW_REG_XCC_ID, 0, 4)")
            w("  s_and_b32 s84, s84, 7")
            w("  s_getreg_b32 s85, hwreg(HW_REG_HW_ID, 8, 8)")
            w("  s_memrealtime s[90:91]")
        if xcc == 1:
            SG = 80
            w(f"  s_mov_b32 s{SG}, s76")
            w(f"  s_and_b32 s{SG+1}, s77, 0xffff")
            w(f"  s_mov_b32 s{SG+2}, 256")
            w(f"  s_mov_b32 s{SG+3}, 0x00020000")
            w("  s_getreg_b32 s84, hwreg(HW_REG_XCC_ID, 0, 4)")
            w("  s_and_b32 s84, s84, 7")
            w("  s_lshl_b32 s85, s84, 2")
            w("  v_mov_b32 v7, 1")
            w("  s_mov_b64 exec, 1")
            w(f"  buffer_atomic_add v7, off, s[{SG}:{SG+3}], s85 sc0")
            w("  s_mov_b64 exec, -1")
        if tlbpf:
            w(f"  s_mul_i32 s{sTmp}, s2, {HEADB}")
            w(f"  s_add_u32 s{SN}, s6, s{sTmp}")
            w(f"  s_addc_u32 s{SN+1}, s7, 0")
            w(f"  s_and_b32 s{SN+1}, s{SN+1}, 0xffff")
            w(f"  s_mov_b32 s{SN+2}, {HEADB}")
            w(f"  s_mov_b32 s{SN+3}, 0x00020000")
            w(f"  s_add_u32 s{SA}, s8, s{sTmp}")
            w(f"  s_addc_u32 s{SA+1}, s9, 0")
            w(f"  s_and_b32 s{SA+1}, s{SA+1}, 0xffff")
            w(f"  s_mov_b32 s{SA+2}, {HEADB}")
            w(f"  s_mov_b32 s{SA+3}, 0x00020000")
            w(f"  v_lshlrev_b32 v12, 18, v{L}")
            w(f"  buffer_load_dword v13, v12, s[{SA}:{SA+3}], 0 offen nt")
            w(f"  buffer_load_dword v14, v12, s[{SN}:{SN+3}], 0 offen nt")
        gsh = GS.bit_length() - 1
        sGrp, sMem, sAll = 86, 87, 88
        sTag = 89
        if xcc == 2:
            assert GS == 8
            w(f"  s_mov_b32 s{sGrp}, s85")
            w(f"  s_mov_b32 s{sMem}, s84")
            w("  s_waitcnt lgkmcnt(0)")
            w(f"  s_lshr_b32 s{sTag}, s90, 10")
            w(f"  s_and_b32 s{sTag}, s{sTag}, 0xffff")
            w(f"  s_lshl_b32 s92, s{sTag}, 16")
            w(f"  s_sub_u32 s93, 2, s{sTag}")
        elif xcc == 1:
            assert GS == 8
            w("  s_waitcnt vmcnt(0)")
            w(f"  v_readfirstlane_b32 s{sGrp}, v7")
            w(f"  s_mov_b32 s{sMem}, s84")
            w(f"  s_mov_b32 s{sAll}, 0")
            w("  s_nop 3")
        else:
            w(f"  s_lshr_b32 s{sGrp}, s{sWG}, {gsh}")
            w(f"  s_and_b32 s{sMem}, s{sWG}, {GS-1}")
            w(f"  s_mov_b32 s{sAll}, 1")
        GSTR = GS*lstride+256
        w(f"  s_min_u32 s{sGrp}, s{sGrp}, 255")
        w(f"  s_mul_i32 s{sTry}, s{sGrp}, {GSTR}")
        w(f"  s_add_u32 s{SD}, s62, {WSOFF}")
        w(f"  s_addc_u32 s{SD+1}, s63, 0")
        w(f"  s_and_b32 s{SD+1}, s{SD+1}, 0xffff")
        if not full:
            w(f"  s_mov_b32 s{SD+2}, 32")
            w(f"  s_mov_b32 s{SD+3}, 0x00020000")
            w(f"  s_and_b32 s{sSlot}, s{sWG}, 7")
            w(f"  s_lshl_b32 s{sSlot}, s{sSlot}, 2")
            w(f"  v_and_b32 v1, 7, v{L}")
            w("  v_lshlrev_b32 v1, 2, v1")
        else:
            w(f"  s_mov_b32 s{SD+2}, {256*GSTR}")
            w(f"  s_mov_b32 s{SD+3}, 0x00020000")
            w(f"  s_mul_i32 s{sSlot}, s{sMem}, {lstride}")
            w(f"  s_add_u32 s{sSlot}, s{sSlot}, s{sTry}")
            w(f"  v_and_b32 v1, 7, v{L}")
            w(f"  v_lshlrev_b32 v6, 4, v1")
            w(f"  v_and_b32 v1, {GS-1}, v{L}")
            w(f"  v_mul_u32_u24 v1, {lstride}, v1")
        if pfd:
            w(f"  s_mov_b32 s95, {2*NW}")
            w(f"  s_mov_b32 s74, {HEADB}")
            w(f"  s_mov_b32 s75, 0x00020000")
            w(f"  s_mul_i32 s{sStag}, s2, {stag}")
            w(f"  v_mul_u32_u24 v16, {pfs}, v{L}")
        w(f"  v_lshrrev_b32 v12, 4, v6")
        w(f"  v_lshlrev_b32 v12, 2, v12")
        w(f"  s_mul_i32 s{sTmp}, s{sGrp}, {phm}")
        if xcc == 2:
            w(f"  s_lshr_b32 s{sTmp2}, s{sGrp}, 5")
            w(f"  s_mul_i32 s{sTmp2}, s{sTmp2}, 9")
            w(f"  s_add_u32 s{sTmp}, s{sTmp}, s{sTmp2}")
        w(f"  s_and_b32 s{sTmp}, s{sTmp}, {S1-1}")
        w(f"  s_sub_u32 s{sLast}, {S1}, s{sTmp}")
        if xcc == 2:
            w(f"  s_or_b32 s94, s{sLast}, s92")
        else:
            w(f"  s_mov_b32 s94, s{sLast}")
        w(f"  v_mov_b32 v8, s94")
        w(f"  v_mov_b32 v9, s94")
        w(f"  v_mov_b32 v10, s94")
        w(f"  v_mov_b32 v11, s94")
        w(f"  s_mov_b64 exec, 255")
        if cst:
            w(f"  buffer_store_dwordx4 v[8:11], v6, s[{SD}:{SD+3}], s{sSlot} offen {stpol}" if not swap else f"  s_mov_b64 exec, 1\n  buffer_atomic_swap v8, off, s[{SD}:{SD+3}], s{sSlot}")
        w("  s_mov_b64 exec, -1")
        w("L_cl:")
        w(f"  ds_read_b32 v2, v{vCT}")
        w("  s_waitcnt lgkmcnt(0)")
        w(f"  v_readfirstlane_b32 s{sNxt}, v2")
        w("  s_nop 3")
        w(f"  s_cmp_ge_u32 s{sNxt}, {2*NBLK}")
        w("  s_cbranch_scc1 L_cfin")
        w(f"  s_cmp_lt_u32 s{sNxt}, s{sLast}")
        w("  s_cbranch_scc1 L_cnopub")
        w(f"  s_cmp_ge_u32 s{sLast}, {SW}")
        w(f"  s_cselect_b32 s{sTmp}, {S2}, {S1}")
        if S3:
            w(f"  s_cmp_ge_u32 s{sLast}, {SW3}")
            w(f"  s_cselect_b32 s{sTmp}, {S3}, s{sTmp}")
        w(f"  s_add_u32 s{sLast}, s{sLast}, s{sTmp}")
        w("L_cpub:")
        if xcc == 2:
            w(f"  s_or_b32 s94, s{sLast}, s92")
        else:
            w(f"  s_mov_b32 s94, s{sLast}")
        w(f"  v_mov_b32 v8, s94")
        w(f"  v_mov_b32 v9, s94")
        w(f"  v_mov_b32 v10, s94")
        w(f"  v_mov_b32 v11, s94")
        w(f"  s_mov_b64 exec, 255")
        if cst:
            w(f"  buffer_store_dwordx4 v[8:11], v6, s[{SD}:{SD+3}], s{sSlot} offen {stpol}" if not swap else f"  s_mov_b64 exec, 1\n  buffer_atomic_swap v8, off, s[{SD}:{SD+3}], s{sSlot}")
        w("  s_mov_b64 exec, -1")
        w("L_cnopub:")
        w(f"  buffer_load_dword v4, v1, s[{SD}:{SD+3}], s{sTry} offen {ldpol}")
        if pfd:
            w(f"  s_add_u32 s{sTmp2}, s{sNxt}, {pfd}")
            w(f"  s_min_u32 s{sTmp2}, s{sTmp2}, {2*NBLK}")
            w("L_pf:")
            w(f"  s_cmp_ge_u32 s95, s{sTmp2}")
            w("  s_cbranch_scc1 L_pfdone")
            w(f"  s_cmp_ge_u32 s95, {NBLK}")
            w(f"  s_cselect_b32 s72, s{SA}, s{SN}")
            w(f"  s_cselect_b32 s73, s{SA+1}, s{SN+1}")
            w(f"  s_add_u32 s{sTmp}, s95, s{sStag}")
            w(f"  s_and_b32 s{sTmp}, s{sTmp}, {NBLK-1}")
            w(f"  s_mul_i32 s{sTmp}, s{sTmp}, {BLKB}")
            w(f"  s_mov_b64 exec, {(1<<pfl)-1}")
            w(f"  buffer_load_dword v15, v16, s[72:75], s{sTmp} offen nt")
            w("  s_mov_b64 exec, -1")
            w("  s_add_u32 s95, s95, 1")
            w("  s_branch L_pf")
            w("L_pfdone:")
        if xcc == 2:
            w("  s_waitcnt vmcnt(0)")
            w("  v_lshrrev_b32 v13, 16, v4")
            w("  v_add_u32 v13, s93, v13")
            w("  v_and_b32 v13, 0xffff, v13")
            w("  v_and_b32 v4, 0xffff, v4")
            w("  v_cmp_ge_u32 vcc, 4, v13")
            w("  v_mov_b32 v14, 255")
            w("  s_nop 0")
            w("  v_cndmask_b32 v4, v14, v4, vcc")
        if xcc == 1:
            w(f"  s_cmp_lg_u32 s{sAll}, 0")
            w("  s_cbranch_scc1 L_call")
            w(f"  buffer_load_dword v13, v12, s[{SG}:{SG+3}], 0 offen sc1")
            w("  s_waitcnt vmcnt(0)")
            w(f"  v_cmp_lt_u32 vcc, s{sGrp}, v13")
            w("  v_mov_b32 v14, 255")
            w("  s_nop 0")
            w("  v_cndmask_b32 v4, v14, v4, vcc")
            w("  s_cmp_eq_u64 vcc, -1")
            w(f"  s_cselect_b32 s{sAll}, 1, 0")
            w("L_call:")
        w("  s_waitcnt vmcnt(0)")
        if GS > 8:
            for sh in (1, 2, 4, 8):
                w("  s_nop 1")
                w(f"  v_min_u32_dpp v4, v4, v4 row_ror:{sh} row_mask:0xf bank_mask:0xf")
            w("  s_nop 1")
            nrow = GS // 16
            for i in range(nrow):
                w(f"  v_readlane_b32 s{64+i}, v4, {16*i}")
            w("  s_nop 3")
            for i in range(1, nrow):
                w(f"  s_min_u32 s64, s64, s{64+i}")
        else:
            for i in range(8):
                w(f"  v_readlane_b32 s{64+i}, v4, {i}")
            w("  s_nop 3")
            for i in range(1, 8):
                w(f"  s_min_u32 s64, s64, s{64+i}")
        w(f"  s_min_u32 s64, s64, 250")
        w(f"  s_add_u32 s64, s64, {D}")
        w("  v_mov_b32 v5, s64")
        w("  s_mov_b64 exec, 1")
        w(f"  ds_write_b32 v{vCT}, v5 offset:12")
        w("  s_mov_b64 exec, -1")
        if csleep:
            w(f"  s_sleep {csleep}")
        w("  s_branch L_cl")
        w("L_cfin:")
        if xcc == 2:
            w(f"  s_or_b32 s94, 255, s92")
        else:
            w(f"  s_mov_b32 s94, 255")
        w(f"  v_mov_b32 v8, s94")
        w(f"  v_mov_b32 v9, s94")
        w(f"  v_mov_b32 v10, s94")
        w(f"  v_mov_b32 v11, s94")
        w(f"  s_mov_b64 exec, 255")
        if cst:
            w(f"  buffer_store_dwordx4 v[8:11], v6, s[{SD}:{SD+3}], s{sSlot} offen {stpol}" if not swap else f"  s_mov_b64 exec, 1\n  buffer_atomic_swap v8, off, s[{SD}:{SD+3}], s{sSlot}")
        w("L_cexit:")
        w("  v_mov_b32 v5, 255")
        w("  s_mov_b64 exec, 1")
        w(f"  ds_write_b32 v{vCT}, v5 offset:12")
        w("  s_endpgm")

    def reduce_partials(dst, va):
        for p in range(8):
            w(f"  ds_read_b128 {vr(T+4*p)}, v{va} offset:{p*PS}")
        for p in range(8):
            w(f"  s_waitcnt lgkmcnt({7-p})")
            for e in range(4):
                if p == 0:
                    w(f"  v_mov_b32 v{dst+e}, v{T+4*p+e}")
                else:
                    w(f"  v_add_f32 v{dst+e}, v{dst+e}, v{T+4*p+e}")

    w("L_dumpK:")
    stamp(3)
    w(f"  s_mov_b32 s{sDump}, 1")
    dump()
    w("  s_mov_b64 exec, 1")
    w(f"  ds_add_rtn_u32 v{vCL}, v{vCT}, v{vOne} offset:4")
    w("  s_mov_b64 exec, -1")
    for r in range(64):
        w(f"  v_mov_b32 v{ACC+r}, 0")
    w("  s_waitcnt lgkmcnt(0)")
    w(f"  v_readfirstlane_b32 s{sTmp}, v{vCL}")
    w("  s_nop 3")
    w(f"  s_cmp_lg_u32 s{sTmp}, {NW-1}")
    w("  s_cbranch_scc1 L_chk")
    SUM = ALO
    VA, VK = AHI, AHI+2
    w(f"  v_mov_b32 v{VA}, v{vRD}")
    w(f"  v_mov_b32 v{VK}, v{vKW}")
    w(f"  s_mov_b32 s{sPi}, 0")
    w("L_kred:")
    reduce_partials(SUM, VA)
    w(f"  v_cvt_pk_bf16_f32 v{T}, v{SUM}, v{SUM+1}")
    w(f"  v_cvt_pk_bf16_f32 v{T+1}, v{SUM+2}, v{SUM+3}")
    w(f"  ds_write_b16 v{VK}, v{T} offset:0")
    w(f"  ds_write_b16_d16_hi v{VK}, v{T} offset:{KPROW}")
    w(f"  ds_write_b16 v{VK}, v{T+1} offset:{2*KPROW}")
    w(f"  ds_write_b16_d16_hi v{VK}, v{T+1} offset:{3*KPROW}")
    w(f"  v_add_u32 v{VA}, 64, v{VA}")
    w(f"  v_add_u32 v{VK}, 64, v{VK}")
    w(f"  s_add_u32 s{sPi}, s{sPi}, 1")
    w(f"  s_cmp_lt_u32 s{sPi}, 6")
    w("  s_waitcnt lgkmcnt(0)")
    w("  s_cbranch_scc1 L_kred")
    S = T + 24
    for e in range(4):
        w(f"  v_mov_b32 v{S+e}, 0")
    for t in range(6):
        w(f"  ds_read_b128 {vr(T+4*t)}, v{vKR} offset:{t*64}")
    w("  s_waitcnt vmcnt(25)")
    for t in range(6):
        w(f"  s_waitcnt lgkmcnt({5-t})")
        w(f"  v_mfma_f32_16x16x32_bf16 {vr(S)}, {vr(T+4*t)}, {vr(QF+4*t)}, {vr(S)}")
    w("  s_nop 7")
    w("  s_nop 1")
    w(f"  s_mov_b32 s{sC0}, 0x3d93cd3a")
    w(f"  s_mov_b32 s{sC1}, 0x3fb8aa3b")
    X = T
    for rep in range(2):
        w(f"  v_cvt_pk_bf16_f32 v{X}, v{S}, v{S+1}")
        w(f"  v_cvt_pk_bf16_f32 v{X+1}, v{S+2}, v{S+3}")
        w(f"  v_lshlrev_b32 v{S}, 16, v{X}")
        w(f"  v_and_b32 v{S+1}, 0xffff0000, v{X}")
        w(f"  v_lshlrev_b32 v{S+2}, 16, v{X+1}")
        w(f"  v_and_b32 v{S+3}, 0xffff0000, v{X+1}")
        if rep == 0:
            for e in range(4):
                w(f"  v_mul_f32 v{S+e}, s{sC0}, v{S+e}")
    w(f"  v_max_f32 v{X}, v{S}, v{S+1}")
    w(f"  v_max3_f32 v{X}, v{X}, v{S+2}, v{S+3}")
    w(f"  ds_swizzle_b32 v{X+1}, v{X} offset:0x401F")
    w("  s_waitcnt lgkmcnt(0)")
    w(f"  v_max_f32 v{X}, v{X}, v{X+1}")
    for e in range(4):
        w(f"  v_sub_f32 v{S+e}, v{S+e}, v{X}")
    for e in range(4):
        w(f"  v_mul_f32 v{S+e}, s{sC1}, v{S+e}")
    for e in range(4):
        w(f"  v_exp_f32 v{S+e}, v{S+e}")
    w("  s_nop 0")
    w(f"  v_add_f32 v{X}, v{S}, v{S+1}")
    w(f"  v_add_f32 v{X+1}, v{S+2}, v{S+3}")
    w(f"  v_add_f32 v{X}, v{X}, v{X+1}")
    w(f"  ds_swizzle_b32 v{X+1}, v{X} offset:0x401F")
    w("  s_waitcnt lgkmcnt(0)")
    w(f"  v_add_f32 v{X}, v{X}, v{X+1}")
    w(f"  v_rcp_f32 v{X}, v{X}")
    w("  s_nop 0")
    for e in range(4):
        w(f"  v_mul_f32 v{S+e}, v{S+e}, v{X}")
    w(f"  v_cvt_pk_bf16_f32 v{X}, v{S}, v{S+1}")
    w(f"  v_cvt_pk_bf16_f32 v{X+1}, v{S+2}, v{S+3}")
    w(f"  ds_write_b64 v{vPF}, {vr(X,2)}")
    w("  s_mov_b64 exec, 1")
    w(f"  ds_write_b32 v{vCT}, v{vOne} offset:8")
    w("  s_mov_b64 exec, -1")
    w("  s_waitcnt lgkmcnt(0)")
    w("  s_branch L_chk")

    if lastbody:
        w("L_last:")
        body_last()
        w(f"  s_mov_b32 s{sCur}, s{sNxt}")
        w(f"  s_cmp_eq_u32 s{sDump}, 0")
        w("  s_cbranch_scc1 L_dumpK")
    w("L_tail:")
    stamp(4)
    w("L_spin:")
    w(f"  ds_read_b32 v{vCL}, v{vCT} offset:8")
    w("  s_waitcnt lgkmcnt(0)")
    w(f"  v_readfirstlane_b32 s{sTmp}, v{vCL}")
    w("  s_nop 3")
    w(f"  s_cmp_lg_u32 s{sTmp}, 0")
    w("  s_cbranch_scc1 L_go")
    w("  s_sleep 1")
    w("  s_branch L_spin")
    w("L_go:")
    dump()
    PB = QF
    w(f"  ds_read_b64 {vr(PB,2)}, v{vPF}")
    w("  s_mov_b64 exec, 1")
    w(f"  ds_add_u32 v{vCT}, v{vOne} offset:16")
    w("  s_mov_b64 exec, -1")
    w(f"  s_mul_i32 s{sTmp}, s{sW}, 96")
    w(f"  v_add_u32 v{vRD}, s{sTmp}, v{vRD}")
    w(f"  v_add_u32 v{vRD2}, s{sTmp}, v{vRD2}")
    w("L_vspin:")
    w(f"  ds_read_b32 v{vCL}, v{vCT} offset:16")
    w("  s_waitcnt lgkmcnt(0)")
    w(f"  v_readfirstlane_b32 s{sTmp}, v{vCL}")
    w("  s_nop 3")
    w(f"  s_cmp_lt_u32 s{sTmp}, {NW}")
    w("  s_cbranch_scc1 L_vspin")
    BA = ACC
    BB = ACC + 32
    for p in range(8):
        w(f"  ds_read_b128 {vr(BA+4*p)}, v{vRD} offset:{p*PS}")
    for p in range(4):
        w(f"  ds_read_b128 {vr(BB+4*p)}, v{vRD2} offset:{p*PS}")
    w(f"  v_cndmask_b32 v{PB+2}, 0, v{PB}, s[{sG01}:{sG01+1}]")
    w(f"  v_cndmask_b32 v{PB+3}, 0, v{PB+1}, s[{sG01}:{sG01+1}]")
    w(f"  v_cndmask_b32 v{PB+4}, 0, v{PB}, s[{sG23}:{sG23+1}]")
    w(f"  v_cndmask_b32 v{PB+5}, 0, v{PB+1}, s[{sG23}:{sG23+1}]")
    for p in range(1, 8):
        w(f"  s_waitcnt lgkmcnt({11-p})")
        for e in range(4):
            w(f"  v_add_f32 v{BA+e}, v{BA+e}, v{BA+4*p+e}")
    Dd = T
    w(f"  v_cvt_pk_bf16_f32 v{Dd}, v{BA}, v{BA+1}")
    w(f"  v_cvt_pk_bf16_f32 v{Dd+1}, v{BA+2}, v{BA+3}")
    for p in range(1, 4):
        w(f"  s_waitcnt lgkmcnt({3-p})")
        for e in range(4):
            w(f"  v_add_f32 v{BB+e}, v{BB+e}, v{BB+4*p+e}")
    w(f"  v_mfma_f32_16x16x16_bf16 {vr(Dd+8)}, {vr(Dd,2)}, {vr(PB+2,2)}, 0")
    w(f"  v_mfma_f32_16x16x16_bf16 {vr(Dd+12)}, {vr(Dd,2)}, {vr(PB+4,2)}, 0")
    for e in range(4):
        w(f"  v_mov_b32 v{BB+4+e}, v{BB+e}")
    w("  s_nop 1")
    for e in range(4):
        w(f"  v_permlane32_swap_b32 v{BB+e}, v{BB+4+e}")
    w("  s_nop 1")
    for e in range(4):
        w(f"  v_add_f32 v{BB+e}, v{BB+e}, v{BB+4+e}")
    w(f"  v_cvt_pk_bf16_f32 v{Dd+2}, v{BB}, v{BB+1}")
    w(f"  v_cvt_pk_bf16_f32 v{Dd+3}, v{BB+2}, v{BB+3}")
    w(f"  v_cvt_pk_bf16_f32 v{Dd+20}, v{Dd+8}, v{Dd+9}")
    w(f"  v_cvt_pk_bf16_f32 v{Dd+21}, v{Dd+10}, v{Dd+11}")
    w(f"  v_mfma_f32_16x16x16_bf16 {vr(Dd+16)}, {vr(Dd+2,2)}, {vr(PB+2,2)}, 0")
    w(f"  v_cvt_pk_bf16_f32 v{Dd+22}, v{Dd+12}, v{Dd+13}")
    w(f"  v_cvt_pk_bf16_f32 v{Dd+23}, v{Dd+14}, v{Dd+15}")
    w(f"  buffer_store_dwordx2 {vr(Dd+20,2)}, v{vOUT}, s[{SO}:{SO+3}], 0 offen{OPOL}")
    w(f"  buffer_store_dwordx2 {vr(Dd+22,2)}, v{vOUT}, s[{SO}:{SO+3}], 0 offen offset:32{OPOL}")
    w("  s_nop 7")
    w(f"  v_cvt_pk_bf16_f32 v{Dd+24}, v{Dd+16}, v{Dd+17}")
    w(f"  v_cvt_pk_bf16_f32 v{Dd+25}, v{Dd+18}, v{Dd+19}")
    w(f"  buffer_store_dwordx2 {vr(Dd+24,2)}, v{vOUT}, s[{SO}:{SO+3}], 0 offen offset:64{OPOL}")
    if stamps:
        w("  s_waitcnt vmcnt(0)")
        stamp(5)
        w("  s_waitcnt lgkmcnt(0)")
        w(f"  s_mul_i32 s92, s3, {NW}")
        w(f"  s_add_u32 s92, s92, s{sW}")
        w("  s_lshl_b32 s92, s92, 5")
        w("  s_add_u32 s88, s78, s92")
        w("  s_addc_u32 s89, s79, 0")
        w("  s_and_b32 s89, s89, 0xffff")
        w("  s_mov_b32 s90, 32")
        w("  s_mov_b32 s91, 0x00020000")
        for i in range(6):
            w(f"  v_mov_b32 v{ACC+i}, s{64+2*i}")
        w(f"  v_mov_b32 v{ACC+8}, 0")
        w("  s_mov_b64 exec, 1")
        w(f"  buffer_store_dwordx4 {vr(ACC)}, v{ACC+8}, s[88:91], 0 offen")
        w(f"  buffer_store_dwordx2 {vr(ACC+4,2)}, v{ACC+8}, s[88:91], 0 offen offset:16")
    if tlog:
        w("  s_memrealtime s[64:65]")
        w("  s_waitcnt lgkmcnt(0)")
        w(f"  s_mov_b32 m0, s{sIter}"); w(f"  v_writelane_b32 v{vLOG}, s64, m0")
        w(f"  s_mul_i32 s92, s3, {NW}")
        w(f"  s_add_u32 s92, s92, s{sW}")
        w("  s_lshl_b32 s92, s92, 8")
        w("  s_add_u32 s88, s78, s92")
        w("  s_addc_u32 s89, s79, 0")
        w("  s_and_b32 s89, s89, 0xffff")
        w("  s_mov_b32 s90, 256")
        w("  s_mov_b32 s91, 0x00020000")
        w("  v_and_b32 v0, 63, v0")
        w("  v_lshlrev_b32 v0, 2, v0")
        w(f"  buffer_store_dword v{vLOG}, v0, s[88:91], 0 offen")
    w("L_end:")
    w("  s_endpgm")
    w('.section .rodata,"a"')
    w(".p2align 6")
    w(f".amdhsa_kernel {KNAME}")
    w(f"  .amdhsa_next_free_vgpr {NV}")
    w("  .amdhsa_next_free_sgpr 102")
    w(f"  .amdhsa_accum_offset {(NV+3)//4*4}")
    w("  .amdhsa_group_segment_fixed_size 0")
    w("  .amdhsa_kernarg_size 64")
    w("  .amdhsa_user_sgpr_count 2")
    w("  .amdhsa_user_sgpr_kernarg_segment_ptr 1")
    w("  .amdhsa_system_sgpr_workgroup_id_x 1")
    w(".end_amdhsa_kernel")
    return "\n".join(o) + "\n"


if __name__ == "__main__":
    out = sys.argv[1] if len(sys.argv) > 1 else "standalone__low_rank_proj_linformer__sampling.s"
    kw = {}
    for a in sys.argv[2:]:
        k_, v_ = a.split("=")
        try:
            kw[k_] = int(v_)
        except ValueError:
            kw[k_] = v_.replace("+", " ")
    open(out, "w").write(gen(**kw))
```

```python
import sys

KNAME = "standalone__low_rank_proj_linformer__sampling_kernel"

HEADER = """; Kernarg layout for this problem (64 bytes, ptrs only, base s[0:1]):
"""

DOC = """
Linformer low-rank projection attention, one workgroup per (batch, head); generated by a hand-written Python generator.
  kp = E.K, vp = F.V  (8 x 192 each, reduction over 4096 rows), P = softmax(Q.kp^T / sqrt(192)), O = P.vp
Waves 0-3 stream K then V (non-temporal dwordx4 loads) in blocks of 64 rows claimed from an LDS counter; the start
block is staggered per head.  A block is three 8-load units; each lane transposes its 8x8 bf16 tile with v_perm and
feeds v_mfma_f32_16x16x32_bf16 with A = rows of E/F (rows 0-7 <-> first 32 rows of the block, rows 8-15 <-> last 32).
Per-wave partial sums meet in LDS: the last wave to finish K reduces kp and computes the softmax probabilities while
the others keep streaming V; at the end all four waves reduce vp, apply P with v_mfma_f32_16x16x16_bf16 and store O.
Wave 4 is a control wave: it publishes this workgroup's progress at a few checkpoints (d_ws, tagged per launch) and
reads the progress of the 7 workgroups on the same CU slot of the other XCDs, so that no XCD runs far ahead of the
others in the shared HBM queue (bounded, performance-only flow control; results never depend on it).
"""


def gen(nt=1, stamps=0, stag=1, minlds=84000, hmap=0, fc=1, D=6, maxtry=4096, csleep=4, ssleep=1, cst=1, cld=1, stpol='sc1', ldpol='sc1', gstride=1280, pubstep=2, full=1, lstride=128, S1=16, S2=8, SW=96, phm=5, tlbpf=1, lastbody=1, GS=8, S3=0, SW3=116, xcc=0, opol='', tlog=0, swap=0, pfd=0, pfl=6, pfs=4096, qpol='', apol='', M=1, Mh=0, fake=0):
    NW = 4
    o = []
    w = o.append
    NT = " nt" if nt else ""
    OPOL = (" " + opol) if opol else ""

    def stamp(i):
        if stamps:
            w(f"  s_memrealtime s[{64+2*i}:{65+2*i}]")

    HEADB = 4096 * 384
    BLKB = 64 * 384
    NBLK = 64
    JS = 26 * 16
    RS = 8 * JS
    PS = 2 * RS
    NPART = 2 * NW
    KPB = NPART * PS
    KPROW = 400
    PFR = KPB + 8 * KPROW
    CTR = PFR + 512
    LDS = CTR + 32
    LDS = max(LDS, minlds)
    LDS = (LDS + 255) // 256 * 256
    WSOFF = 1 << 20

    vS = [1, 2, 3]
    vA = 4
    vWP, vWQ, vRD = 5, 6, 7
    vKW, vKR, vOUT, vRD2 = 8, 9, 10, 11
    ARAW, ALO, AHI = 12, 16, 20
    T = 24
    QF = 56
    vCL, vCT, vPF, vOne = 80, 81, 82, 83
    ACC = 84
    RING = 148
    vLIM = RING + 96
    vLOG = RING + 97
    NV = RING + 100
    sIter = 101

    def accP(j): return ACC + 4 * j
    def accQ(j): return ACC + 32 + 4 * j
    def vr(b, n=4): return f"v[{b}:{b+n-1}]"

    SN, SA, SQ, SO = 16, 20, 24, 28
    sKb, sVb = 32, 34
    sW, sCur, sOffN, sOffA = 36, 37, 38, 39
    sSelLo, sSelHi = 40, 41
    sMLo, sMHi = 42, 44
    sTmp, sTmp2 = 46, 47
    sExQ = 48
    sG01, sG23 = 50, 52
    sC0, sC1 = 54, 55
    sNxt, sDump, sPi, sStag = 56, 57, 58, 59
    SD = 60
    sLim, sTry, sOff, sSlot, sLast = 96, 97, 98, 99, 100
    sWG = 3

    nthreads = (NW + (1 if fc else 0)) * 64
    w(HEADER.rstrip("\n"))
    w(f"; @launch grid=(256,1,1) block=({nthreads},1,1) lds={LDS}")
    w('.amdgcn_target "amdgcn-amd-amdhsa--gfx950"')
    for line in DOC.strip("\n").split("\n"):
        w("; " + line)
    w(".text")
    w(f".globl {KNAME}")
    w(".p2align 8")
    w(f".type {KNAME},@function")
    w(f"{KNAME}:")
    w("  s_cmp_ge_u32 s2, 256")
    w("  s_cbranch_scc1 L_end")
    stamp(0)
    w("  s_mov_b32 s3, s2")
    if hmap == 1:
        w("  s_lshr_b32 s60, s3, 3")
        w("  s_and_b32 s61, s3, 7")
        w("  s_lshl_b32 s61, s61, 5")
        w("  s_add_u32 s2, s60, s61")
    w("  s_load_dwordx8 s[4:11], s[0:1], 0")
    w("  s_load_dwordx4 s[12:15], s[0:1], 32")
    w("  s_load_dwordx4 s[76:79], s[0:1], 48")
    L, WV, G, C, CC, HF, G16, C16, G3K = T, T+1, T+2, T+3, T+4, T+5, T+6, T+7, T+8
    w(f"  v_and_b32 v{L}, 63, v0")
    w(f"  v_lshrrev_b32 v{WV}, 6, v0")
    w(f"  v_lshrrev_b32 v{G}, 4, v{L}")
    w(f"  v_and_b32 v{C}, 15, v{L}")
    w(f"  v_readfirstlane_b32 s{sW}, v{WV}")
    w(f"  v_mul_u32_u24 v{G3K}, 3072, v{G}")
    w(f"  v_lshlrev_b32 v{C16}, 4, v{C}")
    w(f"  v_mov_b32 v{vCT}, {CTR}")
    w(f"  v_mov_b32 v{vOne}, 1")
    if fc:
        w(f"  s_cmp_eq_u32 s{sW}, {NW}")
        w("  s_cbranch_scc1 L_ctrl")
    w(f"  v_add_u32 v{vS[0]}, v{G3K}, v{C16}")
    w(f"  v_add_u32 v{vS[2]}, {12288+128}, v{vS[0]}")
    w(f"  v_and_b32 v{CC}, 7, v{C}")
    w(f"  v_lshrrev_b32 v{HF}, 3, v{C}")
    w(f"  v_lshlrev_b32 v{T+9}, 4, v{CC}")
    w(f"  v_add_u32 v{T+9}, v{G3K}, v{T+9}")
    w(f"  v_mul_u32_u24 v{T+10}, {12288-256}, v{HF}")
    w(f"  v_add_u32 v{T+9}, v{T+9}, v{T+10}")
    w(f"  v_add_u32 v{vS[1]}, 256, v{T+9}")
    w(f"  v_lshlrev_b32 v{T+9}, 13, v{CC}")
    w(f"  v_lshlrev_b32 v{T+10}, 6, v{HF}")
    w(f"  v_lshlrev_b32 v{G16}, 4, v{G}")
    w(f"  v_add3_u32 v{vA}, v{T+9}, v{T+10}, v{G16}")
    if fake >= 2:
        for u in range(3):
            for hh in range(2):
                w(f"  v_lshlrev_b32 v{QF+u*2+hh}, 4, v{L}")
                w(f"  v_add_u32 v{QF+u*2+hh}, {u*8192+hh*4096}, v{QF+u*2+hh}")
            w(f"  v_lshlrev_b32 v{QF+8+u}, 11, v{G}")
            w(f"  v_add_u32 v{QF+8+u}, v{QF+8+u}, v{C16}")
            w(f"  v_add_u32 v{QF+8+u}, {u*8192}, v{QF+8+u}")
    w(f"  s_mul_i32 s{sTmp}, s2, {HEADB}")
    w(f"  s_mul_i32 s{sStag}, s2, {stag}")
    if Mh:
        w(f"  s_mul_i32 s95, s2, {Mh}")
        w(f"  s_and_b32 s95, s95, 62")
        w(f"  s_or_b32 s95, s95, 1")
    else:
        w(f"  s_mov_b32 s95, {M}")
    w(f"  s_mul_i32 s{sTmp2}, s{sW}, s95")
    w(f"  s_add_u32 s{sTmp2}, s{sStag}, s{sTmp2}")
    w(f"  s_and_b32 s{sTmp2}, s{sTmp2}, {NBLK-1}")
    w(f"  s_mul_i32 s{sOffN}, s{sTmp2}, {BLKB}")
    w(f"  s_lshl_b32 s{sOffA}, s{sTmp2}, 7")
    w(f"  s_mov_b32 s{SN+2}, {HEADB}")
    w(f"  s_mov_b32 s{SN+3}, 0x00020000")
    w(f"  s_mov_b32 s{SA+2}, 65536")
    w(f"  s_mov_b32 s{SA+3}, 0x00020000")
    w("  s_waitcnt lgkmcnt(0)")
    w(f"  s_add_u32 s{sKb}, s6, s{sTmp}")
    w(f"  s_addc_u32 s{sKb+1}, s7, 0")
    w(f"  s_and_b32 s{sKb+1}, s{sKb+1}, 0xffff")
    w(f"  s_mov_b32 s{SN}, s{sKb}")
    w(f"  s_mov_b32 s{SN+1}, s{sKb+1}")
    w(f"  s_mov_b32 s{SA}, s10")
    w(f"  s_and_b32 s{SA+1}, s11, 0xffff")

    def loads(unit_set, ring_slot, rows=range(8)):
        for i in rows:
            if fake in (0, 1):
                w(f"  buffer_load_dwordx4 {vr(RING + 32*ring_slot + 4*i)}, v{vS[unit_set]}, s[{SN}:{SN+3}], s{sOffN} offen offset:{i*384}{NT}")
            elif fake == 2:
                base = QF + ring_slot*2 + (i // 4)
                w(f"  buffer_load_dwordx4 {vr(RING + 32*ring_slot + 4*i)}, v{base}, s[{SN}:{SN+3}], s{sOffN} offen offset:{(i%4)*1024}{NT}")
            elif fake == 3:
                base = QF + 8 + ring_slot
                w(f"  buffer_load_dwordx4 {vr(RING + 32*ring_slot + 4*i)}, v{base}, s[{SN}:{SN+3}], s{sOffN} offen offset:{i*256}{NT}")

    def loadA():
        w(f"  buffer_load_dwordx4 {vr(ARAW)}, v{vA}, s[{SA}:{SA+3}], s{sOffA} offen{(' '+apol) if apol else ''}")

    UNITS = [(1, ARAW, accQ), (0, ALO, accP), (2, AHI, accP)]

    loads(UNITS[0][0], 0)
    loadA()
    loads(UNITS[1][0], 1)
    loads(UNITS[2][0], 2)
    stamp(1)
    w(f"  s_add_u32 s{sVb}, s8, s{sTmp}")
    w(f"  s_addc_u32 s{sVb+1}, s9, 0")
    w(f"  s_and_b32 s{sVb+1}, s{sVb+1}, 0xffff")
    w(f"  s_and_b32 s11, s11, 0xffff")
    w(f"  s_and_b32 s13, s13, 0xffff")
    w(f"  s_mul_i32 s{sTmp2}, s2, 6144")
    w(f"  s_add_u32 s{SQ}, s4, s{sTmp2}")
    w(f"  s_addc_u32 s{SQ+1}, s5, 0")
    w(f"  s_and_b32 s{SQ+1}, s{SQ+1}, 0xffff")
    w(f"  s_mov_b32 s{SQ+2}, 6144")
    w(f"  s_mov_b32 s{SQ+3}, 0x00020000")
    w(f"  s_add_u32 s{SO}, s14, s{sTmp2}")
    w(f"  s_addc_u32 s{SO+1}, s15, 0")
    w(f"  s_and_b32 s{SO+1}, s{SO+1}, 0xffff")
    w(f"  s_mov_b32 s{SO+2}, 6144")
    w(f"  s_mov_b32 s{SO+3}, 0x00020000")
    w(f"  s_mov_b32 s{sSelLo}, 0x05040100")
    w(f"  s_mov_b32 s{sSelHi}, 0x07060302")
    w(f"  s_mov_b32 s{sMLo}, 0x00ff00ff")
    w(f"  s_mov_b32 s{sMLo+1}, 0x00ff00ff")
    w(f"  s_mov_b32 s{sMHi}, 0xff00ff00")
    w(f"  s_mov_b32 s{sMHi+1}, 0xff00ff00")
    w(f"  s_mov_b32 s{sExQ}, 0x00ff00ff")
    w(f"  s_mov_b32 s{sExQ+1}, 0xff00ff00")
    w(f"  s_mov_b32 s{sG01}, -1")
    w(f"  s_mov_b32 s{sG01+1}, 0")
    w(f"  s_mov_b32 s{sG23}, 0")
    w(f"  s_mov_b32 s{sG23+1}, -1")
    w(f"  s_mov_b32 s{sCur}, s{sW}")
    w(f"  s_mov_b32 s{sDump}, 0")
    w(f"  s_mov_b32 s{sOff}, 0")
    if tlog:
        w(f"  s_mov_b32 s{sIter}, 0")
        w(f"  v_mov_b32 v{vLOG}, 0")
    QO = T + 11
    w(f"  v_mul_u32_u24 v{QO}, 384, v{C}")
    w(f"  v_add_u32 v{QO}, v{QO}, v{G16}")
    for t in range(6):
        w(f"  buffer_load_dwordx4 {vr(QF+4*t if fake < 2 else QF+12)}, v{QO}, s[{SQ}:{SQ+3}], 0 offen offset:{t*64}{(' '+qpol) if qpol else ''}")
    PART, RH, X1, X2, X3 = T+12, T+13, T+14, T+15, T+16
    w(f"  v_lshrrev_b32 v{PART}, 1, v{G}")
    w(f"  v_and_b32 v{RH}, 1, v{G}")
    w(f"  v_lshlrev_b32 v{X1}, 1, v{WV}")
    w(f"  v_add_u32 v{X1}, v{X1}, v{PART}")
    w(f"  v_mul_u32_u24 v{X1}, {PS}, v{X1}")
    w(f"  v_mul_u32_u24 v{X2}, {RS}, v{RH}")
    w(f"  v_add_u32 v{X1}, v{X1}, v{X2}")
    w(f"  v_lshlrev_b32 v{X3}, 7, v{PART}")
    w(f"  v_add3_u32 v{vWP}, v{X1}, v{X3}, v{C16}")
    w(f"  v_mul_u32_u24 v{X3}, 384, v{PART}")
    w(f"  v_add_u32 v{X1}, v{X1}, v{C16}")
    w(f"  v_add_u32 v{X1}, 256, v{X1}")
    w(f"  v_sub_u32 v{vWQ}, v{X1}, v{X3}")
    w(f"  v_lshlrev_b32 v{X1}, 1, v{PART}")
    w(f"  v_add_u32 v{X1}, v{X1}, v{HF}")
    w(f"  v_lshlrev_b32 v{X1}, 4, v{X1}")
    w(f"  v_mul_u32_u24 v{X3}, {JS}, v{CC}")
    w(f"  v_add3_u32 v{vRD}, v{X1}, v{X3}, v{X2}")
    w(f"  v_lshlrev_b32 v{X1}, 4, v{PART}")
    w(f"  v_add_u32 v{X1}, v{X1}, v{C}")
    w(f"  v_lshlrev_b32 v{X1}, 1, v{X1}")
    w(f"  v_mul_u32_u24 v{X3}, {4*KPROW}, v{RH}")
    w(f"  v_add_u32 v{X3}, {KPB}, v{X3}")
    w(f"  v_add_u32 v{vKW}, v{X1}, v{X3}")
    w(f"  v_mul_u32_u24 v{X3}, {KPROW}, v{CC}")
    w(f"  v_add_u32 v{X3}, {KPB}, v{X3}")
    w(f"  v_add_u32 v{vKR}, v{X3}, v{G16}")
    w(f"  v_mul_u32_u24 v{X1}, 384, v{C}")
    w(f"  v_mul_u32_u24 v{X2}, 96, v{WV}")
    w(f"  v_lshlrev_b32 v{X3}, 3, v{G}")
    w(f"  v_add3_u32 v{vOUT}, v{X1}, v{X2}, v{X3}")
    w(f"  v_mul_u32_u24 v{X1}, {RS}, v{RH}")
    w(f"  v_mul_u32_u24 v{X2}, {JS}, v{CC}")
    w(f"  v_lshlrev_b32 v{X3}, 4, v{HF}")
    w(f"  v_add3_u32 v{X1}, v{X1}, v{X2}, v{X3}")
    w(f"  v_mul_u32_u24 v{X2}, {4*PS}, v{PART}")
    w(f"  v_add_u32 v{X1}, v{X1}, v{X2}")
    w(f"  v_add_u32 v{vRD2}, 64, v{X1}")
    w(f"  v_lshlrev_b32 v{X1}, 3, v{L}")
    w(f"  v_add_u32 v{vPF}, {PFR}, v{X1}")

    def init_counters():
        w(f"  v_mov_b32 v{X1}, {NW}")
        w(f"  v_mov_b32 v{X2}, 0")
        w(f"  v_mov_b32 v{X3}, 0")
        w(f"  v_mov_b32 v{X3+1}, 255")
        w(f"  v_mov_b32 v{X3+2}, 0")
        w(f"  v_mov_b32 v{X3+3}, 0")
        w(f"  ds_write_b128 v{vCT}, {vr(X1)}")
        w(f"  ds_write_b64 v{vCT}, {vr(X3+2,2)} offset:16")
        w("  s_waitcnt lgkmcnt(0)")

    if not fc:
        w(f"  s_cmp_lg_u32 s{sW}, 0")
        w("  s_cbranch_scc1 L_noinit")
        init_counters()
        w("L_noinit:")
    for r in range(64):
        w(f"  v_mov_b32 v{ACC+r}, 0")
    w("  s_barrier")
    if stamps:
        w("  s_waitcnt vmcnt(22)")
        stamp(2)

    def body_last():
        for u, (st, areg, accf) in enumerate(UNITS):
            if u == 1:
                w("  s_waitcnt vmcnt(8)")
            if u == 2:
                w("  s_waitcnt vmcnt(0)")
            R = RING + 32 * u
            for dw in range(4):
                for m in range(4):
                    x = R + 4 * (2 * m) + dw
                    y = R + 4 * (2 * m + 1) + dw
                    w(f"  v_perm_b32 v{T + 4*(2*dw) + m}, v{y}, v{x}, s{sSelLo}")
                    w(f"  v_perm_b32 v{T + 4*(2*dw+1) + m}, v{y}, v{x}, s{sSelHi}")
                if dw >= 1:
                    for j in (2*(dw-1), 2*(dw-1)+1):
                        w(f"  v_mfma_f32_16x16x32_bf16 {vr(accf(j))}, {vr(areg)}, {vr(T+4*j)}, {vr(accf(j))}")
            w("  s_nop 1")
            for j in (6, 7):
                w(f"  v_mfma_f32_16x16x32_bf16 {vr(accf(j))}, {vr(areg)}, {vr(T+4*j)}, {vr(accf(j))}")

    def body(first=False):
        extra = 6 if first else 0
        tag = "f" if first else "l"
        w("  s_mov_b64 exec, 1")
        w(f"  ds_add_rtn_u32 v{vCL}, v{vCT}, v{vOne}")
        w("  s_mov_b64 exec, -1")
        if fc:
            w(f"  ds_read_b32 v{vLIM}, v{vCT} offset:12")
        for u, (st, areg, accf) in enumerate(UNITS):
            n_out = (16 if u == 0 else 17) + extra
            w(f"  s_waitcnt vmcnt({n_out})")
            if u == 0:
                if tlog:
                    w("  s_memrealtime s[64:65]")
                w("  s_waitcnt lgkmcnt(0)")
                if tlog:
                    w(f"  s_mov_b32 m0, s{sIter}"); w(f"  v_writelane_b32 v{vLOG}, s64, m0")
                    w(f"  s_add_u32 s{sIter}, s{sIter}, 1")
                w(f"  v_readfirstlane_b32 s{sNxt}, v{vCL}")
                if fc:
                    w(f"  v_readfirstlane_b32 s{sLim}, v{vLIM}")
                for e in range(4):
                    w(f"  v_cndmask_b32 v{ALO+e}, 0, v{ARAW+e}, s[{sMLo}:{sMLo+1}]")
                    w(f"  v_cndmask_b32 v{AHI+e}, 0, v{ARAW+e}, s[{sMHi}:{sMHi+1}]")
                if lastbody and not first:
                    w(f"  s_cmp_ge_u32 s{sNxt}, {2*NBLK}")
                    w("  s_cbranch_scc1 L_last")
                if fc:
                    w(f"  s_cmp_gt_u32 s{sNxt}, s{sLim}")
                    w(f"  s_cbranch_scc1 L_stall_{tag}")
                    w(f"L_cont_{tag}:")
                w(f"  s_cmp_ge_u32 s{sNxt}, {NBLK}")
                w(f"  s_cselect_b32 s{SN}, s{sVb}, s{sKb}")
                w(f"  s_cselect_b32 s{SN+1}, s{sVb+1}, s{sKb+1}")
                w(f"  s_cselect_b32 s{SA}, s12, s10")
                w(f"  s_cselect_b32 s{SA+1}, s13, s11")
                w(f"  s_cmp_ge_u32 s{sNxt}, {2*NBLK}")
                w(f"  s_cselect_b32 s{SN+2}, 0, {HEADB}")
                w(f"  s_cselect_b32 s{SA+2}, 0, 65536")
                w(f"  s_mul_i32 s{sTmp}, s{sNxt}, s95")
                w(f"  s_add_u32 s{sTmp}, s{sTmp}, s{sStag}")
                w(f"  s_and_b32 s{sTmp}, s{sTmp}, {NBLK-1}")
                w(f"  s_mul_i32 s{sOffN}, s{sTmp}, {BLKB}")
                w(f"  s_lshl_b32 s{sOffA}, s{sTmp}, 7")
            R = RING + 32 * u
            for m in range(4):
                for dw in range(4):
                    x = R + 4 * (2 * m) + dw
                    y = R + 4 * (2 * m + 1) + dw
                    w(f"  v_perm_b32 v{T + 4*(2*dw) + m}, v{y}, v{x}, s{sSelLo}")
                    w(f"  v_perm_b32 v{T + 4*(2*dw+1) + m}, v{y}, v{x}, s{sSelHi}")
                loads(st, u, rows=(2 * m, 2 * m + 1))
            for j in range(8):
                w(f"  v_mfma_f32_16x16x32_bf16 {vr(accf(j))}, {vr(areg)}, {vr(T+4*j)}, {vr(accf(j))}")
            if u == 0:
                loadA()

    def after_body():
        w(f"  s_mov_b32 s{sCur}, s{sNxt}")
        w(f"  s_cmp_lt_u32 s{sCur}, {NBLK}")
        w("  s_cbranch_scc1 L_loop")
        w(f"  s_cmp_eq_u32 s{sDump}, 0")
        w("  s_cbranch_scc1 L_dumpK")

    body(first=True)
    after_body()
    w("  s_branch L_chk")
    w("L_loop:")
    body()
    after_body()
    w("L_chk:")
    w(f"  s_cmp_lt_u32 s{sCur}, {2*NBLK}")
    w("  s_cbranch_scc1 L_loop")
    w("  s_branch L_tail")

    def dump():
        w("  s_nop 7")
        w("  s_nop 1")
        for j in range(8):
            w(f"  ds_write_b128 v{vWP}, {vr(accP(j))} offset:{j*JS}")
        w(f"  s_mov_b64 exec, s[{sExQ}:{sExQ+1}]")
        for j in range(8):
            w(f"  ds_write_b128 v{vWQ}, {vr(accQ(j))} offset:{j*JS}")
        w("  s_mov_b64 exec, -1")

    if fc:
        for tag in ("f", "l"):
            w(f"L_stall_{tag}:")
            w(f"  s_cmp_ge_u32 s{sNxt}, {2*NBLK}")
            w(f"  s_cbranch_scc1 L_cont_{tag}")
            w(f"  s_cmp_lg_u32 s{sOff}, 0")
            w(f"  s_cbranch_scc1 L_cont_{tag}")
            w(f"  s_mov_b32 s{sTry}, 0")
            w(f"L_st_{tag}:")
            w(f"  s_sleep {ssleep}")
            w(f"  ds_read_b32 v{vLIM}, v{vCT} offset:12")
            w("  s_waitcnt lgkmcnt(0)")
            w(f"  v_readfirstlane_b32 s{sLim}, v{vLIM}")
            w("  s_nop 3")
            w(f"  s_cmp_le_u32 s{sNxt}, s{sLim}")
            w(f"  s_cbranch_scc1 L_cont_{tag}")
            w(f"  s_add_u32 s{sTry}, s{sTry}, 1")
            w(f"  s_cmp_lt_u32 s{sTry}, {maxtry}")
            w(f"  s_cbranch_scc1 L_st_{tag}")
            w(f"  s_mov_b32 s{sOff}, 1")
            w(f"  s_branch L_cont_{tag}")

        w("L_ctrl:")
        init_counters()
        w("  s_barrier")
        w("  s_setprio 3")
        w("  s_mov_b32 s62, s78")
        w("  s_mov_b32 s63, s79")
        if xcc == 2:
            w("  s_getreg_b32 s84, hwreg(HW_REG_XCC_ID, 0, 4)")
            w("  s_and_b32 s84, s84, 7")
            w("  s_getreg_b32 s85, hwreg(HW_REG_HW_ID, 8, 8)")
            w("  s_memrealtime s[90:91]")
        if xcc == 1:
            SG = 80
            w(f"  s_mov_b32 s{SG}, s76")
            w(f"  s_and_b32 s{SG+1}, s77, 0xffff")
            w(f"  s_mov_b32 s{SG+2}, 256")
            w(f"  s_mov_b32 s{SG+3}, 0x00020000")
            w("  s_getreg_b32 s84, hwreg(HW_REG_XCC_ID, 0, 4)")
            w("  s_and_b32 s84, s84, 7")
            w("  s_lshl_b32 s85, s84, 2")
            w("  v_mov_b32 v7, 1")
            w("  s_mov_b64 exec, 1")
            w(f"  buffer_atomic_add v7, off, s[{SG}:{SG+3}], s85 sc0")
            w("  s_mov_b64 exec, -1")
        if tlbpf:
            w(f"  s_mul_i32 s{sTmp}, s2, {HEADB}")
            w(f"  s_add_u32 s{SN}, s6, s{sTmp}")
            w(f"  s_addc_u32 s{SN+1}, s7, 0")
            w(f"  s_and_b32 s{SN+1}, s{SN+1}, 0xffff")
            w(f"  s_mov_b32 s{SN+2}, {HEADB}")
            w(f"  s_mov_b32 s{SN+3}, 0x00020000")
            w(f"  s_add_u32 s{SA}, s8, s{sTmp}")
            w(f"  s_addc_u32 s{SA+1}, s9, 0")
            w(f"  s_and_b32 s{SA+1}, s{SA+1}, 0xffff")
            w(f"  s_mov_b32 s{SA+2}, {HEADB}")
            w(f"  s_mov_b32 s{SA+3}, 0x00020000")
            w(f"  v_lshlrev_b32 v12, 18, v{L}")
            w(f"  buffer_load_dword v13, v12, s[{SA}:{SA+3}], 0 offen nt")
            w(f"  buffer_load_dword v14, v12, s[{SN}:{SN+3}], 0 offen nt")
        gsh = GS.bit_length() - 1
        sGrp, sMem, sAll = 86, 87, 88
        sTag = 89
        if xcc == 2:
            assert GS == 8
            w(f"  s_mov_b32 s{sGrp}, s85")
            w(f"  s_mov_b32 s{sMem}, s84")
            w("  s_waitcnt lgkmcnt(0)")
            w(f"  s_lshr_b32 s{sTag}, s90, 10")
            w(f"  s_and_b32 s{sTag}, s{sTag}, 0xffff")
            w(f"  s_lshl_b32 s92, s{sTag}, 16")
            w(f"  s_sub_u32 s93, 2, s{sTag}")
        elif xcc == 1:
            assert GS == 8
            w("  s_waitcnt vmcnt(0)")
            w(f"  v_readfirstlane_b32 s{sGrp}, v7")
            w(f"  s_mov_b32 s{sMem}, s84")
            w(f"  s_mov_b32 s{sAll}, 0")
            w("  s_nop 3")
        else:
            w(f"  s_lshr_b32 s{sGrp}, s{sWG}, {gsh}")
            w(f"  s_and_b32 s{sMem}, s{sWG}, {GS-1}")
            w(f"  s_mov_b32 s{sAll}, 1")
        GSTR = GS*lstride+256
        w(f"  s_min_u32 s{sGrp}, s{sGrp}, 255")
        w(f"  s_mul_i32 s{sTry}, s{sGrp}, {GSTR}")
        w(f"  s_add_u32 s{SD}, s62, {WSOFF}")
        w(f"  s_addc_u32 s{SD+1}, s63, 0")
        w(f"  s_and_b32 s{SD+1}, s{SD+1}, 0xffff")
        if not full:
            w(f"  s_mov_b32 s{SD+2}, 32")
            w(f"  s_mov_b32 s{SD+3}, 0x00020000")
            w(f"  s_and_b32 s{sSlot}, s{sWG}, 7")
            w(f"  s_lshl_b32 s{sSlot}, s{sSlot}, 2")
            w(f"  v_and_b32 v1, 7, v{L}")
            w("  v_lshlrev_b32 v1, 2, v1")
        else:
            w(f"  s_mov_b32 s{SD+2}, {256*GSTR}")
            w(f"  s_mov_b32 s{SD+3}, 0x00020000")
            w(f"  s_mul_i32 s{sSlot}, s{sMem}, {lstride}")
            w(f"  s_add_u32 s{sSlot}, s{sSlot}, s{sTry}")
            w(f"  v_and_b32 v1, 7, v{L}")
            w(f"  v_lshlrev_b32 v6, 4, v1")
            w(f"  v_and_b32 v1, {GS-1}, v{L}")
            w(f"  v_mul_u32_u24 v1, {lstride}, v1")
        if pfd:
            w(f"  s_mov_b32 s95, {2*NW}")
            w(f"  s_mov_b32 s74, {HEADB}")
            w(f"  s_mov_b32 s75, 0x00020000")
            w(f"  s_mul_i32 s{sStag}, s2, {stag}")
            w(f"  v_mul_u32_u24 v16, {pfs}, v{L}")
        w(f"  v_lshrrev_b32 v12, 4, v6")
        w(f"  v_lshlrev_b32 v12, 2, v12")
        w(f"  s_mul_i32 s{sTmp}, s{sGrp}, {phm}")
        if xcc == 2:
            w(f"  s_lshr_b32 s{sTmp2}, s{sGrp}, 5")
            w(f"  s_mul_i32 s{sTmp2}, s{sTmp2}, 9")
            w(f"  s_add_u32 s{sTmp}, s{sTmp}, s{sTmp2}")
        w(f"  s_and_b32 s{sTmp}, s{sTmp}, {S1-1}")
        w(f"  s_sub_u32 s{sLast}, {S1}, s{sTmp}")
        if xcc == 2:
            w(f"  s_or_b32 s94, s{sLast}, s92")
        else:
            w(f"  s_mov_b32 s94, s{sLast}")
        w(f"  v_mov_b32 v8, s94")
        w(f"  v_mov_b32 v9, s94")
        w(f"  v_mov_b32 v10, s94")
        w(f"  v_mov_b32 v11, s94")
        w(f"  s_mov_b64 exec, 255")
        if cst:
            w(f"  buffer_store_dwordx4 v[8:11], v6, s[{SD}:{SD+3}], s{sSlot} offen {stpol}" if not swap else f"  s_mov_b64 exec, 1\n  buffer_atomic_swap v8, off, s[{SD}:{SD+3}], s{sSlot}")
        w("  s_mov_b64 exec, -1")
        w("L_cl:")
        w(f"  ds_read_b32 v2, v{vCT}")
        w("  s_waitcnt lgkmcnt(0)")
        w(f"  v_readfirstlane_b32 s{sNxt}, v2")
        w("  s_nop 3")
        w(f"  s_cmp_ge_u32 s{sNxt}, {2*NBLK}")
        w("  s_cbranch_scc1 L_cfin")
        w(f"  s_cmp_lt_u32 s{sNxt}, s{sLast}")
        w("  s_cbranch_scc1 L_cnopub")
        w(f"  s_cmp_ge_u32 s{sLast}, {SW}")
        w(f"  s_cselect_b32 s{sTmp}, {S2}, {S1}")
        if S3:
            w(f"  s_cmp_ge_u32 s{sLast}, {SW3}")
            w(f"  s_cselect_b32 s{sTmp}, {S3}, s{sTmp}")
        w(f"  s_add_u32 s{sLast}, s{sLast}, s{sTmp}")
        w("L_cpub:")
        if xcc == 2:
            w(f"  s_or_b32 s94, s{sLast}, s92")
        else:
            w(f"  s_mov_b32 s94, s{sLast}")
        w(f"  v_mov_b32 v8, s94")
        w(f"  v_mov_b32 v9, s94")
        w(f"  v_mov_b32 v10, s94")
        w(f"  v_mov_b32 v11, s94")
        w(f"  s_mov_b64 exec, 255")
        if cst:
            w(f"  buffer_store_dwordx4 v[8:11], v6, s[{SD}:{SD+3}], s{sSlot} offen {stpol}" if not swap else f"  s_mov_b64 exec, 1\n  buffer_atomic_swap v8, off, s[{SD}:{SD+3}], s{sSlot}")
        w("  s_mov_b64 exec, -1")
        w("L_cnopub:")
        w(f"  buffer_load_dword v4, v1, s[{SD}:{SD+3}], s{sTry} offen {ldpol}")
        if pfd:
            w(f"  s_add_u32 s{sTmp2}, s{sNxt}, {pfd}")
            w(f"  s_min_u32 s{sTmp2}, s{sTmp2}, {2*NBLK}")
            w("L_pf:")
            w(f"  s_cmp_ge_u32 s95, s{sTmp2}")
            w("  s_cbranch_scc1 L_pfdone")
            w(f"  s_cmp_ge_u32 s95, {NBLK}")
            w(f"  s_cselect_b32 s72, s{SA}, s{SN}")
            w(f"  s_cselect_b32 s73, s{SA+1}, s{SN+1}")
            w(f"  s_add_u32 s{sTmp}, s95, s{sStag}")
            w(f"  s_and_b32 s{sTmp}, s{sTmp}, {NBLK-1}")
            w(f"  s_mul_i32 s{sTmp}, s{sTmp}, {BLKB}")
            w(f"  s_mov_b64 exec, {(1<<pfl)-1}")
            w(f"  buffer_load_dword v15, v16, s[72:75], s{sTmp} offen nt")
            w("  s_mov_b64 exec, -1")
            w("  s_add_u32 s95, s95, 1")
            w("  s_branch L_pf")
            w("L_pfdone:")
        if xcc == 2:
            w("  s_waitcnt vmcnt(0)")
            w("  v_lshrrev_b32 v13, 16, v4")
            w("  v_add_u32 v13, s93, v13")
            w("  v_and_b32 v13, 0xffff, v13")
            w("  v_and_b32 v4, 0xffff, v4")
            w("  v_cmp_ge_u32 vcc, 4, v13")
            w("  v_mov_b32 v14, 255")
            w("  s_nop 0")
            w("  v_cndmask_b32 v4, v14, v4, vcc")
        if xcc == 1:
            w(f"  s_cmp_lg_u32 s{sAll}, 0")
            w("  s_cbranch_scc1 L_call")
            w(f"  buffer_load_dword v13, v12, s[{SG}:{SG+3}], 0 offen sc1")
            w("  s_waitcnt vmcnt(0)")
            w(f"  v_cmp_lt_u32 vcc, s{sGrp}, v13")
            w("  v_mov_b32 v14, 255")
            w("  s_nop 0")
            w("  v_cndmask_b32 v4, v14, v4, vcc")
            w("  s_cmp_eq_u64 vcc, -1")
            w(f"  s_cselect_b32 s{sAll}, 1, 0")
            w("L_call:")
        w("  s_waitcnt vmcnt(0)")
        if GS > 8:
            for sh in (1, 2, 4, 8):
                w("  s_nop 1")
                w(f"  v_min_u32_dpp v4, v4, v4 row_ror:{sh} row_mask:0xf bank_mask:0xf")
            w("  s_nop 1")
            nrow = GS // 16
            for i in range(nrow):
                w(f"  v_readlane_b32 s{64+i}, v4, {16*i}")
            w("  s_nop 3")
            for i in range(1, nrow):
                w(f"  s_min_u32 s64, s64, s{64+i}")
        else:
            for i in range(8):
                w(f"  v_readlane_b32 s{64+i}, v4, {i}")
            w("  s_nop 3")
            for i in range(1, 8):
                w(f"  s_min_u32 s64, s64, s{64+i}")
        w(f"  s_min_u32 s64, s64, 250")
        w(f"  s_add_u32 s64, s64, {D}")
        w("  v_mov_b32 v5, s64")
        w("  s_mov_b64 exec, 1")
        w(f"  ds_write_b32 v{vCT}, v5 offset:12")
        w("  s_mov_b64 exec, -1")
        if csleep:
            w(f"  s_sleep {csleep}")
        w("  s_branch L_cl")
        w("L_cfin:")
        if xcc == 2:
            w(f"  s_or_b32 s94, 255, s92")
        else:
            w(f"  s_mov_b32 s94, 255")
        w(f"  v_mov_b32 v8, s94")
        w(f"  v_mov_b32 v9, s94")
        w(f"  v_mov_b32 v10, s94")
        w(f"  v_mov_b32 v11, s94")
        w(f"  s_mov_b64 exec, 255")
        if cst:
            w(f"  buffer_store_dwordx4 v[8:11], v6, s[{SD}:{SD+3}], s{sSlot} offen {stpol}" if not swap else f"  s_mov_b64 exec, 1\n  buffer_atomic_swap v8, off, s[{SD}:{SD+3}], s{sSlot}")
        w("L_cexit:")
        w("  v_mov_b32 v5, 255")
        w("  s_mov_b64 exec, 1")
        w(f"  ds_write_b32 v{vCT}, v5 offset:12")
        w("  s_endpgm")

    def reduce_partials(dst, va):
        for p in range(8):
            w(f"  ds_read_b128 {vr(T+4*p)}, v{va} offset:{p*PS}")
        for p in range(8):
            w(f"  s_waitcnt lgkmcnt({7-p})")
            for e in range(4):
                if p == 0:
                    w(f"  v_mov_b32 v{dst+e}, v{T+4*p+e}")
                else:
                    w(f"  v_add_f32 v{dst+e}, v{dst+e}, v{T+4*p+e}")

    w("L_dumpK:")
    stamp(3)
    w(f"  s_mov_b32 s{sDump}, 1")
    dump()
    w("  s_mov_b64 exec, 1")
    w(f"  ds_add_rtn_u32 v{vCL}, v{vCT}, v{vOne} offset:4")
    w("  s_mov_b64 exec, -1")
    for r in range(64):
        w(f"  v_mov_b32 v{ACC+r}, 0")
    w("  s_waitcnt lgkmcnt(0)")
    w(f"  v_readfirstlane_b32 s{sTmp}, v{vCL}")
    w("  s_nop 3")
    w(f"  s_cmp_lg_u32 s{sTmp}, {NW-1}")
    w("  s_cbranch_scc1 L_chk")
    SUM = ALO
    VA, VK = AHI, AHI+2
    w(f"  v_mov_b32 v{VA}, v{vRD}")
    w(f"  v_mov_b32 v{VK}, v{vKW}")
    w(f"  s_mov_b32 s{sPi}, 0")
    w("L_kred:")
    reduce_partials(SUM, VA)
    w(f"  v_cvt_pk_bf16_f32 v{T}, v{SUM}, v{SUM+1}")
    w(f"  v_cvt_pk_bf16_f32 v{T+1}, v{SUM+2}, v{SUM+3}")
    w(f"  ds_write_b16 v{VK}, v{T} offset:0")
    w(f"  ds_write_b16_d16_hi v{VK}, v{T} offset:{KPROW}")
    w(f"  ds_write_b16 v{VK}, v{T+1} offset:{2*KPROW}")
    w(f"  ds_write_b16_d16_hi v{VK}, v{T+1} offset:{3*KPROW}")
    w(f"  v_add_u32 v{VA}, 64, v{VA}")
    w(f"  v_add_u32 v{VK}, 64, v{VK}")
    w(f"  s_add_u32 s{sPi}, s{sPi}, 1")
    w(f"  s_cmp_lt_u32 s{sPi}, 6")
    w("  s_waitcnt lgkmcnt(0)")
    w("  s_cbranch_scc1 L_kred")
    S = T + 24
    for e in range(4):
        w(f"  v_mov_b32 v{S+e}, 0")
    for t in range(6):
        w(f"  ds_read_b128 {vr(T+4*t)}, v{vKR} offset:{t*64}")
    w("  s_waitcnt vmcnt(25)")
    for t in range(6):
        w(f"  s_waitcnt lgkmcnt({5-t})")
        w(f"  v_mfma_f32_16x16x32_bf16 {vr(S)}, {vr(T+4*t)}, {vr(QF+4*t)}, {vr(S)}")
    w("  s_nop 7")
    w("  s_nop 1")
    w(f"  s_mov_b32 s{sC0}, 0x3d93cd3a")
    w(f"  s_mov_b32 s{sC1}, 0x3fb8aa3b")
    X = T
    for rep in range(2):
        w(f"  v_cvt_pk_bf16_f32 v{X}, v{S}, v{S+1}")
        w(f"  v_cvt_pk_bf16_f32 v{X+1}, v{S+2}, v{S+3}")
        w(f"  v_lshlrev_b32 v{S}, 16, v{X}")
        w(f"  v_and_b32 v{S+1}, 0xffff0000, v{X}")
        w(f"  v_lshlrev_b32 v{S+2}, 16, v{X+1}")
        w(f"  v_and_b32 v{S+3}, 0xffff0000, v{X+1}")
        if rep == 0:
            for e in range(4):
                w(f"  v_mul_f32 v{S+e}, s{sC0}, v{S+e}")
    w(f"  v_max_f32 v{X}, v{S}, v{S+1}")
    w(f"  v_max3_f32 v{X}, v{X}, v{S+2}, v{S+3}")
    w(f"  ds_swizzle_b32 v{X+1}, v{X} offset:0x401F")
    w("  s_waitcnt lgkmcnt(0)")
    w(f"  v_max_f32 v{X}, v{X}, v{X+1}")
    for e in range(4):
        w(f"  v_sub_f32 v{S+e}, v{S+e}, v{X}")
    for e in range(4):
        w(f"  v_mul_f32 v{S+e}, s{sC1}, v{S+e}")
    for e in range(4):
        w(f"  v_exp_f32 v{S+e}, v{S+e}")
    w("  s_nop 0")
    w(f"  v_add_f32 v{X}, v{S}, v{S+1}")
    w(f"  v_add_f32 v{X+1}, v{S+2}, v{S+3}")
    w(f"  v_add_f32 v{X}, v{X}, v{X+1}")
    w(f"  ds_swizzle_b32 v{X+1}, v{X} offset:0x401F")
    w("  s_waitcnt lgkmcnt(0)")
    w(f"  v_add_f32 v{X}, v{X}, v{X+1}")
    w(f"  v_rcp_f32 v{X}, v{X}")
    w("  s_nop 0")
    for e in range(4):
        w(f"  v_mul_f32 v{S+e}, v{S+e}, v{X}")
    w(f"  v_cvt_pk_bf16_f32 v{X}, v{S}, v{S+1}")
    w(f"  v_cvt_pk_bf16_f32 v{X+1}, v{S+2}, v{S+3}")
    w(f"  ds_write_b64 v{vPF}, {vr(X,2)}")
    w("  s_mov_b64 exec, 1")
    w(f"  ds_write_b32 v{vCT}, v{vOne} offset:8")
    w("  s_mov_b64 exec, -1")
    w("  s_waitcnt lgkmcnt(0)")
    w("  s_branch L_chk")

    if lastbody:
        w("L_last:")
        body_last()
        w(f"  s_mov_b32 s{sCur}, s{sNxt}")
        w(f"  s_cmp_eq_u32 s{sDump}, 0")
        w("  s_cbranch_scc1 L_dumpK")
    w("L_tail:")
    stamp(4)
    w("L_spin:")
    w(f"  ds_read_b32 v{vCL}, v{vCT} offset:8")
    w("  s_waitcnt lgkmcnt(0)")
    w(f"  v_readfirstlane_b32 s{sTmp}, v{vCL}")
    w("  s_nop 3")
    w(f"  s_cmp_lg_u32 s{sTmp}, 0")
    w("  s_cbranch_scc1 L_go")
    w("  s_sleep 1")
    w("  s_branch L_spin")
    w("L_go:")
    dump()
    PB = QF
    w(f"  ds_read_b64 {vr(PB,2)}, v{vPF}")
    w("  s_mov_b64 exec, 1")
    w(f"  ds_add_u32 v{vCT}, v{vOne} offset:16")
    w("  s_mov_b64 exec, -1")
    w(f"  s_mul_i32 s{sTmp}, s{sW}, 96")
    w(f"  v_add_u32 v{vRD}, s{sTmp}, v{vRD}")
    w(f"  v_add_u32 v{vRD2}, s{sTmp}, v{vRD2}")
    w("L_vspin:")
    w(f"  ds_read_b32 v{vCL}, v{vCT} offset:16")
    w("  s_waitcnt lgkmcnt(0)")
    w(f"  v_readfirstlane_b32 s{sTmp}, v{vCL}")
    w("  s_nop 3")
    w(f"  s_cmp_lt_u32 s{sTmp}, {NW}")
    w("  s_cbranch_scc1 L_vspin")
    BA = ACC
    BB = ACC + 32
    for p in range(8):
        w(f"  ds_read_b128 {vr(BA+4*p)}, v{vRD} offset:{p*PS}")
    for p in range(4):
        w(f"  ds_read_b128 {vr(BB+4*p)}, v{vRD2} offset:{p*PS}")
    w(f"  v_cndmask_b32 v{PB+2}, 0, v{PB}, s[{sG01}:{sG01+1}]")
    w(f"  v_cndmask_b32 v{PB+3}, 0, v{PB+1}, s[{sG01}:{sG01+1}]")
    w(f"  v_cndmask_b32 v{PB+4}, 0, v{PB}, s[{sG23}:{sG23+1}]")
    w(f"  v_cndmask_b32 v{PB+5}, 0, v{PB+1}, s[{sG23}:{sG23+1}]")
    for p in range(1, 8):
        w(f"  s_waitcnt lgkmcnt({11-p})")
        for e in range(4):
            w(f"  v_add_f32 v{BA+e}, v{BA+e}, v{BA+4*p+e}")
    Dd = T
    w(f"  v_cvt_pk_bf16_f32 v{Dd}, v{BA}, v{BA+1}")
    w(f"  v_cvt_pk_bf16_f32 v{Dd+1}, v{BA+2}, v{BA+3}")
    for p in range(1, 4):
        w(f"  s_waitcnt lgkmcnt({3-p})")
        for e in range(4):
            w(f"  v_add_f32 v{BB+e}, v{BB+e}, v{BB+4*p+e}")
    w(f"  v_mfma_f32_16x16x16_bf16 {vr(Dd+8)}, {vr(Dd,2)}, {vr(PB+2,2)}, 0")
    w(f"  v_mfma_f32_16x16x16_bf16 {vr(Dd+12)}, {vr(Dd,2)}, {vr(PB+4,2)}, 0")
    for e in range(4):
        w(f"  v_mov_b32 v{BB+4+e}, v{BB+e}")
    w("  s_nop 1")
    for e in range(4):
        w(f"  v_permlane32_swap_b32 v{BB+e}, v{BB+4+e}")
    w("  s_nop 1")
    for e in range(4):
        w(f"  v_add_f32 v{BB+e}, v{BB+e}, v{BB+4+e}")
    w(f"  v_cvt_pk_bf16_f32 v{Dd+2}, v{BB}, v{BB+1}")
    w(f"  v_cvt_pk_bf16_f32 v{Dd+3}, v{BB+2}, v{BB+3}")
    w(f"  v_cvt_pk_bf16_f32 v{Dd+20}, v{Dd+8}, v{Dd+9}")
    w(f"  v_cvt_pk_bf16_f32 v{Dd+21}, v{Dd+10}, v{Dd+11}")
    w(f"  v_mfma_f32_16x16x16_bf16 {vr(Dd+16)}, {vr(Dd+2,2)}, {vr(PB+2,2)}, 0")
    w(f"  v_cvt_pk_bf16_f32 v{Dd+22}, v{Dd+12}, v{Dd+13}")
    w(f"  v_cvt_pk_bf16_f32 v{Dd+23}, v{Dd+14}, v{Dd+15}")
    w(f"  buffer_store_dwordx2 {vr(Dd+20,2)}, v{vOUT}, s[{SO}:{SO+3}], 0 offen{OPOL}")
    w(f"  buffer_store_dwordx2 {vr(Dd+22,2)}, v{vOUT}, s[{SO}:{SO+3}], 0 offen offset:32{OPOL}")
    w("  s_nop 7")
    w(f"  v_cvt_pk_bf16_f32 v{Dd+24}, v{Dd+16}, v{Dd+17}")
    w(f"  v_cvt_pk_bf16_f32 v{Dd+25}, v{Dd+18}, v{Dd+19}")
    w(f"  buffer_store_dwordx2 {vr(Dd+24,2)}, v{vOUT}, s[{SO}:{SO+3}], 0 offen offset:64{OPOL}")
    if stamps:
        w("  s_waitcnt vmcnt(0)")
        stamp(5)
        w("  s_waitcnt lgkmcnt(0)")
        w(f"  s_mul_i32 s92, s3, {NW}")
        w(f"  s_add_u32 s92, s92, s{sW}")
        w("  s_lshl_b32 s92, s92, 5")
        w("  s_add_u32 s88, s78, s92")
        w("  s_addc_u32 s89, s79, 0")
        w("  s_and_b32 s89, s89, 0xffff")
        w("  s_mov_b32 s90, 32")
        w("  s_mov_b32 s91, 0x00020000")
        for i in range(6):
            w(f"  v_mov_b32 v{ACC+i}, s{64+2*i}")
        w(f"  v_mov_b32 v{ACC+8}, 0")
        w("  s_mov_b64 exec, 1")
        w(f"  buffer_store_dwordx4 {vr(ACC)}, v{ACC+8}, s[88:91], 0 offen")
        w(f"  buffer_store_dwordx2 {vr(ACC+4,2)}, v{ACC+8}, s[88:91], 0 offen offset:16")
    if tlog:
        w("  s_memrealtime s[64:65]")
        w("  s_waitcnt lgkmcnt(0)")
        w(f"  s_mov_b32 m0, s{sIter}"); w(f"  v_writelane_b32 v{vLOG}, s64, m0")
        w(f"  s_mul_i32 s92, s3, {NW}")
        w(f"  s_add_u32 s92, s92, s{sW}")
        w("  s_lshl_b32 s92, s92, 8")
        w("  s_add_u32 s88, s78, s92")
        w("  s_addc_u32 s89, s79, 0")
        w("  s_and_b32 s89, s89, 0xffff")
        w("  s_mov_b32 s90, 256")
        w("  s_mov_b32 s91, 0x00020000")
        w("  v_and_b32 v0, 63, v0")
        w("  v_lshlrev_b32 v0, 2, v0")
        w(f"  buffer_store_dword v{vLOG}, v0, s[88:91], 0 offen")
    w("L_end:")
    w("  s_endpgm")
    w('.section .rodata,"a"')
    w(".p2align 6")
    w(f".amdhsa_kernel {KNAME}")
    w(f"  .amdhsa_next_free_vgpr {NV}")
    w("  .amdhsa_next_free_sgpr 102")
    w(f"  .amdhsa_accum_offset {(NV+3)//4*4}")
    w("  .amdhsa_group_segment_fixed_size 0")
    w("  .amdhsa_kernarg_size 64")
    w("  .amdhsa_user_sgpr_count 2")
    w("  .amdhsa_user_sgpr_kernarg_segment_ptr 1")
    w("  .amdhsa_system_sgpr_workgroup_id_x 1")
    w(".end_amdhsa_kernel")
    return "\n".join(o) + "\n"


if __name__ == "__main__":
    out = sys.argv[1] if len(sys.argv) > 1 else "standalone__low_rank_proj_linformer__sampling.s"
    kw = {}
    for a in sys.argv[2:]:
        k_, v_ = a.split("=")
        try:
            kw[k_] = int(v_)
        except ValueError:
            kw[k_] = v_.replace("+", " ")
    open(out, "w").write(gen(**kw))
```
